```python
import torch

def _softmax(x, axis=-1):
    return torch.softmax(x, dim=axis)
def _gelu(x):
    return torch.nn.functional.gelu(x, approximate="tanh")
def _silu(x):
    return torch.nn.functional.silu(x)
def _sigmoid(x):
    return torch.sigmoid(x)
def _layernorm(x, axis=-1, eps=1e-5):
    m = x.mean(dim=axis, keepdim=True)
    v = x.var(dim=axis, keepdim=True, unbiased=False)
    return (x - m) / torch.sqrt(v + eps)
def _scatter_add(tgt, idx, src, axis=0):
    return tgt.clone().index_add_(axis, idx, src)
def _segment_sum(src, seg, n):
    out = torch.zeros((n,) + src.shape[1:], dtype=src.dtype)
    return out.index_add_(0, seg, src)
def _pad(x, pw):
    flat = tuple(v for pair in reversed(pw) for v in pair)
    return torch.nn.functional.pad(x, flat)

kernel_name = 'recurrent_scan__spectral_gfnet__dense_activation_squared_relu__prompt'

def setup_inputs():

    _w = (lambda a: (lambda t: t.to(torch.bfloat16) if t.is_floating_point() else t)(torch.as_tensor(a)))
    def _A_setup():
        B, S, D = 1, 2048, 1024
        Df = D // 2 + 1
        return {
            "x": _w((lambda *s: torch.randn(*s, dtype=torch.bfloat16) * 0.05)(B, S, D)),
            "w_r": _w((lambda *s: torch.randn(*s, dtype=torch.bfloat16) * 0.05)(S, Df) * 0.02),
            "w_i": _w((lambda *s: torch.randn(*s, dtype=torch.bfloat16) * 0.05)(S, Df) * 0.02),
        }
    _A_in = _A_setup()

    def _B_setup():
        B, S, D, F = 1, 2048, 1024, 3584
        return {
            "x": _w((lambda *s: torch.randn(*s, dtype=torch.bfloat16) * 0.05)(B, S, D)),
            "w1": _w((lambda *s: torch.randn(*s, dtype=torch.bfloat16) * 0.05)(D, F)),
            "b1": _w((lambda *s: torch.randn(*s, dtype=torch.bfloat16) * 0.4)(F)),
            "w2": _w((lambda *s: torch.randn(*s, dtype=torch.bfloat16) * 0.05)(F, D)),
            "b2": _w((lambda *s: torch.randn(*s, dtype=torch.bfloat16) * 3.2)(D)),
        }
    _B_in = _B_setup()

    return {
        "A_x": _A_in["x"],
        "A_w_r": _A_in["w_r"],
        "A_w_i": _A_in["w_i"],
        "B_x": _B_in["x"],
        "B_w1": _B_in["w1"],
        "B_b1": _B_in["b1"],
        "B_w2": _B_in["w2"],
        "B_b2": _B_in["b2"],
    }

def reference(A_x, A_w_r, A_w_i, B_x, B_w1, B_b1, B_w2, B_b2):
    def _A_ref(x, w_r, w_i):
        B, S, D = x.shape
        X = (lambda x, axes=(-2,-1): torch.fft.rfft2(x.float(), dim=axes))(x, axes=(-2, -1))
        W = w_r + 1j * w_i
        X = X * W
        y = (lambda x, s, axes=(-2,-1): torch.fft.irfft2(x, s=s, dim=axes).to(torch.bfloat16))(X, (S, D), axes=(-2, -1))
        return y

    def _B_ref(x, w1, b1, w2, b2):
        h = torch.einsum("bsd,df->bsf", x, w1) + b1
        zero = torch.zeros_like(h)
        r = torch.where(h > zero, h, zero)
        h = r * r
        out = torch.einsum("bsf,fd->bsd", h, w2) + b2
        return out

    x = A_x
    xn = _layernorm(x, axis=-1)
    s = _A_ref(xn, A_w_r, A_w_i)
    g = _silu(_B_ref(xn, B_w1, B_b1, B_w2, B_b2))
    return x + s * g
```

```python
import re

TRANS = ('v_exp_f32', 'v_log_f32', 'v_rcp_f32', 'v_rsq_f32', 'v_sqrt_f32', 'v_sin_f32', 'v_cos_f32',
         'v_rcp_iflag_f32')

REG_RE = re.compile(r'^(-|\|)*([vas])(\d+|\[(\d+):(\d+)\])\|?$')


def parse_reg(tok):
    tok = tok.strip()
    if tok.startswith('abs(') and tok.endswith(')'):
        tok = tok[4:-1]
    if tok.startswith('-abs(') and tok.endswith(')'):
        tok = tok[5:-1]
    if tok in ('vcc',):
        return {('s', 'vcc_lo'), ('s', 'vcc_hi')}
    if tok in ('vcc_lo', 'vcc_hi'):
        return {('s', tok)}
    if tok == 'exec':
        return {('s', 'exec_lo'), ('s', 'exec_hi')}
    if tok in ('exec_lo', 'exec_hi'):
        return {('s', tok)}
    if tok == 'm0':
        return {('s', 'm0')}
    m = REG_RE.match(tok)
    if not m:
        return set()
    k = m.group(2)
    if m.group(4) is not None:
        return {(k, i) for i in range(int(m.group(4)), int(m.group(5)) + 1)}
    return {(k, int(m.group(3)))}


def split_ops(s):
    out, depth, cur = [], 0, ''
    for ch in s:
        if ch in '[(':
            depth += 1
        elif ch in '])':
            depth -= 1
        if ch == ',' and depth == 0:
            out.append(cur.strip())
            cur = ''
        else:
            cur += ch
    if cur.strip():
        out.append(cur.strip())
    return out


class Ins:
    __slots__ = ('text', 'mn', 'dst', 'src', 'cls', 'passes', 'srcc', 'ab', 'states', 'dpp', 'wide_store',
                 'sdata', 'lds_dma', 'label', 'target', 'lanesel')

    def __init__(self, text):
        self.text = text
        self.label = None
        self.target = None
        self.dst = set()
        self.src = set()
        self.srcc = set()
        self.ab = set()
        self.sdata = set()
        self.lanesel = set()
        self.passes = 0
        self.states = 1
        self.dpp = False
        self.wide_store = False
        self.lds_dma = False
        t = text.split(';')[0].strip()
        if t.endswith(':'):
            self.label = t[:-1]
            self.cls = 'label'
            self.mn = ''
            self.states = 0
            return
        if t == '' or t.startswith('.'):
            self.cls = 'dir'
            self.mn = ''
            self.states = 0
            return
        parts = t.split(None, 1)
        mn = parts[0]
        for suf in ('_e32', '_e64', '_dpp', '_sdwa'):
            if mn.endswith(suf):
                if suf == '_dpp':
                    self.dpp = True
                mn = mn[:-len(suf)]
        self.mn = mn
        rest = parts[1] if len(parts) > 1 else ''
        ops = split_ops(rest)
        mods = ''
        if ops:
            lp = ops[-1].split(None, 1)
            ops[-1] = lp[0]
            mods = lp[1] if len(lp) > 1 else ''
        if re.search(r'(row_shr|row_shl|row_ror|row_bcast|quad_perm|row_mirror|row_half_mirror|wave_|row_newbcast)', mods):
            self.dpp = True
        regs = [parse_reg(o) for o in ops]

        def U(idx):
            s = set()
            for i in idx:
                if i < len(regs):
                    s |= regs[i]
            return s
        n = len(ops)
        if mn.startswith('v_mfma'):
            self.cls = 'mfma'
            self.dst = U([0])
            self.ab = U([1, 2])
            self.srcc = U([3])
            self.src = self.ab | self.srcc
            if '32x32x16' in mn or '32x32x8' in mn:
                self.passes = 8
            elif '16x16x32' in mn or '16x16x16' in mn:
                self.passes = 4
            else:
                raise ValueError('unknown mfma ' + mn)
        elif mn.startswith('v_cmp'):
            self.cls = 'valu'
            self.dst = U([0])
            self.src = U(range(1, n))
            if mn.startswith('v_cmpx'):
                self.dst |= parse_reg('exec')
        elif mn in ('v_readfirstlane_b32', 'v_readlane_b32'):
            self.cls = 'valu'
            self.dst = U([0])
            self.src = U(range(1, n))
            if mn == 'v_readlane_b32':
                self.lanesel = U([2])
        elif mn == 'v_writelane_b32':
            self.cls = 'valu'
            self.dst = U([0])
            self.src = U(range(0, n))
            self.lanesel = U([2])
        elif mn.startswith('v_permlane') and 'swap' in mn:
            self.cls = 'valu'
            self.dst = U([0, 1])
            self.src = U([0, 1])
        elif mn in ('v_add_co_u32', 'v_sub_co_u32', 'v_addc_co_u32', 'v_subb_co_u32', 'v_subrev_co_u32',
                    'v_div_scale_f32', 'v_mad_u64_u32'):
            self.cls = 'valu'
            self.dst = U([0, 1])
            self.src = U(range(2, n))
        elif mn == 'v_nop':
            self.cls = 'valu'
        elif mn.startswith('v_'):
            self.cls = 'valu'
            self.dst = U([0])
            self.src = U(range(1, n))
            if mn in ('v_fmac_f32', 'v_dot2c_f32_bf16', 'v_pk_fmac_f16', 'v_fmac_f64') or self.dpp or 'sdwa' in text:
                self.src |= self.dst
            if mn == 'v_cndmask_b32' and n == 3:
                self.src |= parse_reg('vcc')
            if mn == 'v_div_fmas_f32':
                self.src |= parse_reg('vcc')
        elif mn.startswith('buffer_load') or mn.startswith('global_load') or mn.startswith('buffer_atomic') \
                or mn.startswith('global_atomic'):
            self.cls = 'vmem'
            islds = bool(re.search(r'\blds\b', mods)) or 'load_lds' in mn
            if islds:
                self.lds_dma = True
                self.src = U(range(0, n)) | {('s', 'm0')}
            elif 'atomic' in mn:
                self.src = U(range(0, n))
                if re.search(r'\bsc0\b', mods):
                    self.dst = U([0])
            else:
                self.dst = U([0])
                self.src = U(range(1, n))
                if 'd16' in mn:
                    self.src |= self.dst
        elif mn.startswith('buffer_store') or mn.startswith('global_store'):
            self.cls = 'vmem'
            self.src = U(range(0, n))
            self.sdata = U([0]) if mn.startswith('buffer') else U([1])
            if mn.endswith('x4') or mn.endswith('x3'):
                self.wide_store = True
        elif mn in ('buffer_inv', 'buffer_wbl2'):
            self.cls = 'vmem'
        elif mn.startswith('ds_read') or mn.startswith('ds_bpermute') or mn.startswith('ds_swizzle') \
                or mn.startswith('ds_permute'):
            self.cls = 'ds'
            self.dst = U([0])
            self.src = U(range(1, n))
            if 'd16' in mn:
                self.src |= self.dst
        elif mn.startswith('ds_'):
            self.cls = 'ds'
            self.src = U(range(0, n))
        elif mn == 's_nop':
            self.cls = 'salu'
            self.states = int(ops[0], 0) + 1
        elif mn.startswith('s_cbranch') or mn == 's_branch':
            self.cls = 'branch'
            self.target = ops[0]
        elif mn.startswith('s_cmp') or mn in ('s_waitcnt', 's_barrier', 's_endpgm', 's_setprio', 's_sleep',
                                              's_bitcmp1_b32', 's_bitcmp0_b32'):
            self.cls = 'salu'
            self.src = U(range(0, n))
        elif mn.startswith('s_load') or mn.startswith('s_buffer_load') or mn in ('s_memtime', 's_memrealtime'):
            self.cls = 'smem'
            self.dst = U([0])
            self.src = U(range(1, n))
        elif mn.startswith('s_'):
            self.cls = 'salu'
            self.dst = U([0])
            self.src = U(range(1, n))
            if 'saveexec' in mn:
                self.dst |= parse_reg('exec')
            if mn in ('s_addk_i32', 's_mulk_i32'):
                self.src |= self.dst
        else:
            raise ValueError('cannot classify: ' + text)


def isv(r):
    return r[0] in 'va'


def need(prev, cur):
    n = 0
    pc, cc = prev.cls, cur.cls
    if pc == 'valu':
        wv = {r for r in prev.dst if isv(r)}
        ws = {r for r in prev.dst if r[0] == 's'}
        if cc == 'mfma':
            if wv & cur.src:
                n = max(n, 2)
            if ('s', 'exec_lo') in ws:
                n = max(n, 4)
        if cc == 'valu':
            if cur.dpp and (wv & cur.src):
                n = max(n, 2)
            if cur.dpp and ('s', 'exec_lo') in ws:
                n = max(n, 5)
            if cur.mn in ('v_readlane_b32', 'v_readfirstlane_b32') and (wv & cur.src):
                n = max(n, 1)
            if cur.mn.startswith('v_permlane') and (wv & cur.src):
                n = max(n, 2)
            if ws & cur.src:
                n = max(n, 2)
            if ws & cur.lanesel:
                n = max(n, 4)
            if cur.mn == 'v_div_fmas_f32' and (ws & cur.src):
                n = max(n, 4)
            if prev.mn in TRANS and cur.mn not in TRANS and (wv & cur.src):
                n = max(n, 1)
            if prev.mn in TRANS and cur.mn in TRANS and (wv & cur.src):
                n = max(n, 1)
            if ('sdwa' in prev.text or 'op_sel' in prev.text) and not prev.mn.startswith('v_pk') and (wv & (cur.src | cur.dst)):
                n = max(n, 1)
            if prev.mn.startswith('v_cmpx') and cur.mn in ('v_readlane_b32', 'v_readfirstlane_b32', 'v_writelane_b32'):
                n = max(n, 4)
            if prev.mn.startswith('v_cmpx') and cur.mn.startswith('v_permlane'):
                n = max(n, 4)
        if prev.mn.startswith('v_dot') and (wv & (cur.src | cur.dst)):
            same_c = False
            if cur.mn == prev.mn:
                ops = split_ops(cur.text.split(';')[0].strip().split(None, 1)[1])
                ab = parse_reg(ops[1]) | parse_reg(ops[2].split()[0])
                same_c = not (wv & ab)
            if not same_c:
                n = max(n, 3)
        if cc == 'vmem' and (ws & cur.src):
            n = max(n, 5)
        if cc in ('salu', 'smem', 'branch') and (ws & cur.src or (cc == 'branch' and ws)):
            n = max(n, 2)
        if prev.mn in TRANS and cc in ('vmem', 'ds', 'mfma') and (wv & cur.src):
            n = max(n, 2)
    if pc == 'mfma':
        P = prev.passes
        big = {4: 8, 8: 12}[P]
        if cc == 'mfma':
            if prev.dst & cur.ab:
                n = max(n, big)
            if prev.dst & cur.srcc:
                if not (prev.dst == cur.srcc and prev.passes == cur.passes):
                    n = max(n, {4: 6, 8: 10}[P])
            if (prev.dst & cur.dst) and not (prev.dst == cur.dst):
                n = max(n, big)
            if (prev.dst & cur.dst) and prev.dst != cur.srcc:
                n = max(n, big if prev.passes != cur.passes else 0)
        elif cc in ('valu', 'vmem', 'ds'):
            if prev.dst & (cur.src | cur.dst):
                n = max(n, big)
            if cc == 'valu' and (prev.srcc & cur.dst):
                n = max(n, {4: 3, 8: 7}[P])
            if cc in ('ds', 'vmem') and (prev.srcc & cur.dst):
                n = max(n, {4: 3, 8: 7}[P])
    if pc == 'vmem' and prev.wide_store:
        if cc == 'valu' and (prev.sdata & cur.dst):
            n = max(n, 2)
        elif prev.sdata & cur.dst:
            n = max(n, 1)
    if pc == 'salu' and ('s', 'm0') in prev.dst:
        if cur.lds_dma or cur.mn.startswith('s_movrel') or 'addtid' in cur.mn:
            n = max(n, 1)
    return n


MAXW = 14


class Asm:
    def __init__(self):
        self.lines = []
        self.uid = 0

    def __call__(self, text):
        for l in text.split('\n'):
            l = l.strip()
            if l:
                self.lines.append(l)

    def label(self, name):
        self.lines.append(name + ':')

    def newlabel(self, base):
        self.uid += 1
        return f'{base}_{self.uid}'

    def comment(self, c):
        self.lines.append('; ' + c)

    def finalize(self, verbose=False):
        ins = []
        for l in self.lines:
            if l.startswith(';'):
                i = Ins('')
                i.text = l
                ins.append(i)
            else:
                ins.append(Ins(l))
        out = []
        nins = 0

        def lookback(seq, cur):
            dist = 0
            miss = 0
            for p in reversed(seq):
                if p.cls in ('label', 'dir'):
                    continue
                r = need(p, cur)
                if r > dist:
                    miss = max(miss, r - dist)
                dist += p.states
                if dist >= MAXW:
                    break
                if p.mn in ('s_branch', 's_endpgm'):
                    break
            return miss
        for cur in ins:
            if cur.cls in ('label', 'dir'):
                out.append(cur)
                continue
            miss = lookback(out[-40:], cur)
            if miss > 0:
                out.append(Ins(f's_nop {miss - 1}'))
                nins += 1
            out.append(cur)
        labels = {i.label: k for k, i in enumerate(out) if i.cls == 'label'}
        fixes = []
        for k, i in enumerate(out):
            if i.cls == 'branch' and i.target in labels:
                t = labels[i.target]
                pre = [p for p in out[max(0, k - 40):k + 1]]
                worst = 0
                seq = list(pre)
                seq[-1] = Ins('s_nop 0')
                cnt = 0
                for c in out[t:t + 40]:
                    if c.cls in ('label', 'dir'):
                        continue
                    worst = max(worst, lookback(seq, c))
                    seq.append(c)
                    cnt += c.states
                    if cnt >= MAXW or c.mn in ('s_branch', 's_endpgm'):
                        break
                if worst > 0:
                    fixes.append((k, worst))
        for k, w in reversed(fixes):
            out.insert(k, Ins(f's_nop {w - 1}'))
            nins += 1
        if verbose:
            print(f'inserted {nins} nops')
        res = []
        for i in out:
            if i.cls == 'label':
                res.append(i.text)
            elif i.text.startswith('.') or i.text.startswith(';'):
                res.append(i.text)
            else:
                res.append('  ' + i.text)
        return '\n'.join(res) + '\n'

    def maxregs(self):
        mv = ma = ms = -1
        for l in self.lines:
            if l.startswith(';') or l.startswith('.'):
                continue
            i = Ins(l)
            for k, x in i.dst | i.src:
                if isinstance(x, int):
                    if k == 'v':
                        mv = max(mv, x)
                    elif k == 'a':
                        ma = max(ma, x)
                    else:
                        ms = max(ms, x)
        return mv + 1, ma + 1, ms + 1


def v(i, n=1):
    return f'v{i}' if n == 1 else f'v[{i}:{i + n - 1}]'


def a(i, n=1):
    return f'a{i}' if n == 1 else f'a[{i}:{i + n - 1}]'


def s(i, n=1):
    return f's{i}' if n == 1 else f's[{i}:{i + n - 1}]'


class Alloc:
    def __init__(self, start=0, limit=256):
        self.n = start
        self.limit = limit

    def __call__(self, cnt=1, align=1):
        if cnt > 1 and align == 1:
            align = 2
        self.n = (self.n + align - 1) // align * align
        r = self.n
        self.n += cnt
        assert self.n <= self.limit, 'out of registers'
        return r


def kernel_text(name, asm, accum_offset=None, verbose=False, minv=0):
    body = asm.finalize(verbose)
    nv, na, ns = asm.maxregs()
    nv = max(nv, minv)
    if accum_offset is None:
        accum_offset = max(4, (nv + 3) // 4 * 4)
    assert nv <= accum_offset, (nv, accum_offset)
    nfv = accum_offset + na if na > 0 else max(nv, accum_offset)
    text = f'.globl {name}\n.p2align 8\n.type {name},@function\n{name}:\n' + body
    desc = f""".amdhsa_kernel {name}
  .amdhsa_next_free_vgpr {nfv}
  .amdhsa_next_free_sgpr {max(ns, 16)}
  .amdhsa_accum_offset {accum_offset}
  .amdhsa_group_segment_fixed_size 0
  .amdhsa_kernarg_size 88
  .amdhsa_user_sgpr_count 2
  .amdhsa_user_sgpr_kernarg_segment_ptr 1
  .amdhsa_system_sgpr_workgroup_id_x 1
  .amdhsa_float_denorm_mode_32 3
.end_amdhsa_kernel
"""
    if verbose:
        print(f'{name}: vgpr {nv} agpr {na} sgpr {ns} accum_offset {accum_offset} nfv {nfv}')
    return text, desc


STAMP_OFF = 64 << 20
SB = 76


class Stamps:
    def __init__(self, on, kidx):
        self.on = on
        self.kidx = kidx

    def take(self, A, j):
        if self.on:
            A(f'{"s_memtime" if self.on == 2 else "s_memrealtime"} s[{SB + 8 + 2 * j}:{SB + 9 + 2 * j}]')

    def flush(self, A, js, s_ws, s_wave, wadd=0, vt=2, waitst=True):
        if not self.on:
            return
        if waitst:
            A('s_waitcnt vmcnt(0)')
        self.take(A, js[-1])
        A(f's_add_u32 s{SB}, s{s_ws}, {STAMP_OFF:#x}')
        A(f's_addc_u32 s{SB + 1}, s{s_ws + 1}, 0')
        A(f's_and_b32 s{SB + 1}, s{SB + 1}, 0xffff')
        A(f's_mov_b32 s{SB + 2}, 0x100000')
        A(f's_mov_b32 s{SB + 3}, 0x20000')
        A(f's_lshl_b32 s{SB + 4}, s2, 3')
        A(f's_add_u32 s{SB + 4}, s{SB + 4}, s{s_wave}')
        A(f's_lshl_b32 s{SB + 4}, s{SB + 4}, 6')
        A(f's_add_u32 s{SB + 4}, s{SB + 4}, {self.kidx * 256 * 8 * 64 + wadd * 64}')
        A(f'v_mov_b32 v{vt + 2}, 0')
        A('s_waitcnt lgkmcnt(0)')
        for j in js:
            A(f'v_mov_b32 v{vt}, s{SB + 8 + 2 * j}')
            A(f'v_mov_b32 v{vt + 1}, s{SB + 9 + 2 * j}')
            A(f'buffer_store_dwordx2 v[{vt}:{vt + 1}], v{vt + 2}, s[{SB}:{SB + 3}], s{SB + 4} offen offset:{j * 8}')
            A('s_waitcnt vmcnt(0)')


def merge(A, subs):
    ls = [list(s.lines) for s in subs]
    n = max(len(l) for l in ls)
    for i in range(n):
        for l in ls:
            if i < len(l):
                A.lines.append(l[i])
```

```python
import struct
from asmlib import *
from gemm import make_srd, KA_X, KA_WR, KA_WI, KA_W1, KA_W2, KA_WS, KA_DBG
from model import OFF_XN, OFF_T, OFF_T2, OFF_S, OFF_H


def fl(x):
    return '0x%08x' % struct.unpack('<I', struct.pack('<f', x))[0]


def wave_reduce2(A, a, b):
    for m in ('row_shr:1', 'row_shr:2', 'row_shr:4', 'row_shr:8'):
        for r in (a, b):
            A(f'v_add_f32_dpp v{r}, v{r}, v{r} {m} row_mask:0xf bank_mask:0xf bound_ctrl:0')
    for m, rm in (('row_bcast:15', '0xa'), ('row_bcast:31', '0xc')):
        for r in (a, b):
            A(f'v_add_f32_dpp v{r}, v{r}, v{r} {m} row_mask:{rm} bank_mask:0xf')


def trig_pairs(A, dst_c, dst_s, ang_of, n, tmp, neg_sin=False):
    for p in range(n // 2):
        ang_of(2 * p, tmp)
        ang_of(2 * p + 1, tmp + 1)
        A(f'v_cos_f32 v{tmp + 2}, v{tmp}')
        A(f'v_cos_f32 v{tmp + 3}, v{tmp + 1}')
        ng = '-' if neg_sin else ''
        A(f'v_sin_f32 v{tmp + 4}, {ng}v{tmp}')
        A(f'v_sin_f32 v{tmp + 5}, {ng}v{tmp + 1}')
        A(f'v_cvt_pk_bf16_f32 v{dst_c + p}, v{tmp + 2}, v{tmp + 3}')
        A(f'v_cvt_pk_bf16_f32 v{dst_s + p}, v{tmp + 4}, v{tmp + 5}')


XROW = 2048 + 32
P_OFF = 8 * XROW
K1_LDS = P_OFF + 8 * 2048 + 128


def k1_prefetch(A, S_W, S_WR, S_WI, S_W1, SRD_P, vL16, PF):
    make_srd(A, SRD_P, S_W1, 1024 * 3584 * 2)
    A(f's_mul_i32 s32, s2, 28672')
    A(f's_mul_i32 s33, s{S_W}, 7168')
    A(f's_add_u32 s32, s32, s33')
    A(f's_add_u32 s33, s32, 4096')
    for i in range(7):
        A(f'buffer_load_dwordx4 v[{PF}:{PF + 3}], v{vL16}, s[{SRD_P}:{SRD_P + 3}], s{32 + (i >> 2)} offen offset:{(i & 3) * 1024}')
    A(f's_mul_i32 s32, s2, 8208')
    A(f's_lshl_b32 s33, s{S_W}, 11')
    A(f's_add_u32 s32, s32, s33')
    for sp in (S_WR, S_WI):
        make_srd(A, SRD_P, sp, 2048 * 513 * 2)
        for i in range(2):
            A(f'buffer_load_dwordx4 v[{PF}:{PF + 3}], v{vL16}, s[{SRD_P}:{SRD_P + 3}], s32 offen offset:{i * 1024}')


def k1_body(A, cfg):
    ST = Stamps(cfg.get('stamp'), cfg.get('kidx0', 0))
    S_W, S_X, S_WR, S_WI, S_W1, S_WS = 5, 6, 8, 10, 12, 14
    ST.take(A, 0)
    A(f's_load_dwordx2 s[{S_X}:{S_X + 1}], s[0:1], {KA_X}')
    A(f's_load_dwordx4 s[{S_WR}:{S_WR + 3}], s[0:1], {KA_WR}')
    A(f's_load_dwordx2 s[{S_W1}:{S_W1 + 1}], s[0:1], {KA_W1}')
    A(f's_load_dwordx2 s[{S_WS}:{S_WS + 1}], s[0:1], {KA_WS}')
    A('v_lshrrev_b32 v1, 6, v0')
    A('v_and_b32 v0, 63, v0')
    A(f'v_readfirstlane_b32 s{S_W}, v1')
    LL = A.newlabel('k1_aux')
    A(f's_cmp_ge_u32 s{S_W}, 4')
    A(f's_cbranch_scc1 {LL}')
    p1_rows(A, cfg, ST, S_W, S_X, S_WS, 0)
    ST.flush(A, [0, 1, 2, 3, 4, 5, 6], S_WS, S_W)
    A('s_endpgm')
    A.label(LL)
    A(f's_sub_u32 s{S_W}, s{S_W}, 4')
    A(f'v_lshlrev_b32 v1, 4, v0')
    A('s_waitcnt lgkmcnt(0)')
    if cfg.get('pfx', 1):
        make_srd(A, 24, S_X, 4 << 20)
        A(f's_lshl_b32 s28, s{S_W}, 8')
        A('s_add_u32 s28, s28, s2')
        A('s_lshl_b32 s28, s28, 11')
        A(f's_add_u32 s28, s28, {4 * 256 * 2048}')
        A(f'buffer_load_dwordx4 v[4:7], v1, s[24:27], s28 offen offset:1024')
        A('s_waitcnt vmcnt(0)')
    if cfg.get('pf', 1):
        k1_prefetch(A, S_W, S_WR, S_WI, S_W1, 24, 1, 4)
    A('s_barrier')
    A('s_barrier')
    A('s_waitcnt vmcnt(0)')
    ST.flush(A, [0, 6], S_WS, S_W, wadd=4)
    A('s_endpgm')


def p1_rows(A, cfg, ST, S_W, S_X, S_WS, LB, after_xn=None):
    xs = cfg.get('xnstore', '')
    ts = cfg.get('tstore', '')
    SRD_X, SRD_O = 16, 20
    R = Alloc(1, 200)
    vL16 = R()
    CA = R(8, 4)
    SA = R(8, 4)
    CB = R(8, 4)
    SB_ = R(8, 4)
    TR = R(16, 2)
    TI = R(16, 2)
    M8 = R(2, 2)
    vA = R(8)
    XD = [R(8, 4), R(8, 4)]
    YR = [R(16, 4), R(16, 4)]
    YI = [R(16, 4), R(16, 4)]
    TM = [R(8, 4), R(8, 4)]
    XB = R(16, 4)
    tmp = TM[0]
    A(f'v_lshlrev_b32 v{vL16}, 4, v0')
    A(f's_lshl_b32 s28, s{S_W}, 8')
    A('s_add_u32 s28, s28, s2')
    A('s_lshl_b32 s28, s28, 11')
    A(f's_add_u32 s29, s28, {4 * 256 * 2048}')
    A('s_waitcnt lgkmcnt(0)')
    make_srd(A, SRD_X, S_X, 4 << 20)
    for z in range(2):
        A(f'buffer_load_dwordx4 v[{XD[z]}:{XD[z] + 3}], v{vL16}, s[{SRD_X}:{SRD_X + 3}], s{28 + z} offen')
        A(f'buffer_load_dwordx4 v[{XD[z] + 4}:{XD[z] + 7}], v{vL16}, s[{SRD_X}:{SRD_X + 3}], s{28 + z} offen offset:1024')
    make_srd(A, SRD_O, S_WS, 8 << 20)

    vh, vc, vf, vb = YR[0], YR[0] + 1, YR[0] + 2, YR[0] + 3
    A(f'v_lshrrev_b32 v{vh}, 5, v0')
    A(f'v_and_b32 v{vc}, 31, v0')
    A(f'v_cvt_f32_u32 v{vh}, v{vh}')
    A(f'v_cvt_f32_u32 v{vf}, v{vc}')
    A(f'v_mul_f32 v{vf}, {fl(1 / 32)}, v{vf}')
    A(f'v_mul_f32 v{vb}, {fl(8.0)}, v{vh}')
    A(f'v_mul_f32 v{vb}, v{vb}, v{vf}')
    trig_pairs(A, CA, SA, lambda i, r: A(f'v_fmamk_f32 v{r}, v{vf}, {fl(16 * (i >> 3) + (i & 7))}, v{vb}'), 16, tmp, True)
    A(f'v_mul_f32 v{vf}, {fl(1 / 32)}, v{vf}')
    A(f'v_mul_f32 v{vb}, {fl(4.0)}, v{vh}')
    A(f'v_mul_f32 v{vb}, v{vb}, v{vf}')
    for i in range(16):
        t = tmp + (i & 1)
        A(f'v_fmamk_f32 v{t}, v{vf}, {fl(8 * (i >> 2) + (i & 3))}, v{vb}')
        A(f'v_cos_f32 v{TR + i}, v{t}')
        A(f'v_sin_f32 v{TI + i}, -v{t}')
    A(f'v_lshrrev_b32 v{vf}, 1, v{vc}')
    A(f'v_cvt_f32_u32 v{vf}, v{vf}')
    A(f'v_mul_f32 v{vf}, {fl(1 / 32)}, v{vf}')
    A(f'v_and_b32 v{vc}, 1, v{vc}')
    A(f'v_cvt_f32_u32 v{vc}, v{vc}')
    A(f'v_mul_f32 v{vb}, {fl(4.0)}, v{vh}')
    A(f'v_mul_f32 v{vb}, v{vb}, v{vf}')
    A(f'v_fmac_f32 v{vb}, {fl(0.25)}, v{vc}')
    trig_pairs(A, CB, SB_, lambda i, r: A(f'v_fmamk_f32 v{r}, v{vf}, {fl(16 * (i >> 3) + 8 * ((i >> 2) & 1) + (i & 3))}, v{vb}'), 16, tmp)
    A(f'v_bfe_u32 v{vf}, v0, 1, 3')
    A(f'v_cvt_f32_u32 v{vf}, v{vf}')
    A(f'v_lshrrev_b32 v{vh}, 4, v0')
    A(f'v_lshlrev_b32 v{vh}, 9, v{vh}')
    A(f'v_add_u32 v{vh}, s2, v{vh}')
    A(f'v_cvt_f32_u32 v{vh}, v{vh}')
    A(f'v_mul_f32 v{vh}, {fl(1 / 2048)}, v{vh}')
    A(f'v_mul_f32 v{vb}, v{vh}, v{vf}')
    A(f'v_fmac_f32 v{vb}, {fl(0.25)}, v{vc}')
    A(f'v_fmamk_f32 v{vh}, v{vf}, {fl(1 / 8)}, v{vb}')
    A(f'v_cos_f32 v{tmp}, v{vb}')
    A(f'v_sin_f32 v{tmp + 1}, v{vb}')
    A(f'v_cos_f32 v{tmp + 2}, v{vh}')
    A(f'v_sin_f32 v{tmp + 3}, v{vh}')
    A(f'v_cvt_pk_bf16_f32 v{M8}, v{tmp}, v{tmp + 1}')
    A(f'v_cvt_pk_bf16_f32 v{M8 + 1}, v{tmp + 2}, v{tmp + 3}')
    vWr, vTr, vPw, vPr, vXr, vXo, vTo = range(vA, vA + 7)
    A(f's_mul_i32 s29, s{S_W}, {XROW}')
    A(f's_add_u32 s29, s29, {LB}')
    A(f'v_add_u32 v{vWr}, s29, v{vL16}')
    A(f'v_lshrrev_b32 v{tmp}, 5, v0')
    A(f'v_lshlrev_b32 v{tmp}, 9, v{tmp}')
    A(f'v_bfe_u32 v{tmp + 1}, v0, 2, 2')
    A(f'v_lshl_add_u32 v{tmp}, v{tmp + 1}, 6, v{tmp}')
    A(f'v_bfe_u32 v{tmp + 1}, v0, 4, 1')
    A(f'v_lshl_add_u32 v{tmp}, v{tmp + 1}, 5, v{tmp}')
    A(f'v_and_b32 v{tmp + 1}, 3, v0')
    A(f'v_lshl_add_u32 v{tmp}, v{tmp + 1}, 3, v{tmp}')
    A(f'v_add_u32 v{vTr}, s29, v{tmp}')
    A(f's_lshl_b32 s29, s{S_W}, 11')
    A(f's_lshr_b32 s30, s{S_W}, 1')
    A(f's_lshl_b32 s30, s30, 3')
    A(f's_add_u32 s29, s29, s30')
    A(f's_add_u32 s29, s29, {P_OFF + LB}')
    A(f'v_and_b32 v{tmp}, 31, v0')
    A(f'v_lshrrev_b32 v{tmp + 1}, 5, v0')
    A(f'v_lshl_add_u32 v{tmp}, v{tmp + 1}, 6, v{tmp}')
    A(f'v_lshl_add_u32 v{vPw}, v{tmp}, 2, s29')
    A(f'v_lshrrev_b32 v{tmp}, 4, v0')
    A(f'v_lshlrev_b32 v{tmp + 1}, 12, v{tmp}')
    A(f'v_and_b32 v{tmp + 2}, 1, v{tmp}')
    A(f'v_lshl_add_u32 v{tmp + 1}, v{tmp + 2}, 3, v{tmp + 1}')
    A(f'v_lshrrev_b32 v{tmp + 2}, 1, v{tmp}')
    A(f'v_lshl_add_u32 v{tmp + 1}, v{tmp + 2}, 6, v{tmp + 1}')
    A(f'v_bfe_u32 v{tmp + 2}, v0, 2, 1')
    A(f'v_lshl_add_u32 v{tmp + 1}, v{tmp + 2}, 7, v{tmp + 1}')
    A(f'v_and_b32 v{tmp + 2}, 3, v0')
    A(f'v_lshl_add_u32 v{tmp + 1}, v{tmp + 2}, 4, v{tmp + 1}')
    A(f'v_bfe_u32 v{tmp + 2}, v0, 3, 1')
    A(f'v_lshl_add_u32 v{tmp + 1}, v{tmp + 2}, 2, v{tmp + 1}')
    A(f's_lshl_b32 s29, s{S_W}, 9')
    A(f's_add_u32 s29, s29, {P_OFF + LB}')
    A(f'v_add_u32 v{vPr}, s29, v{tmp + 1}')
    A(f'v_and_b32 v{tmp}, 7, v0')
    A(f'v_mul_u32_u24 v{vXr}, {XROW}, v{tmp}')
    A(f'v_lshrrev_b32 v{tmp + 1}, 3, v0')
    A(f'v_lshl_add_u32 v{vXr}, v{tmp + 1}, 4, v{vXr}')
    A(f's_lshl_b32 s29, s{S_W}, 9')
    A(f's_add_u32 s29, s29, {LB}')
    A(f'v_add_u32 v{vXr}, s29, v{vXr}')
    A(f'v_lshlrev_b32 v{vXo}, 4, v{tmp}')
    A(f'v_lshl_add_u32 v{vXo}, v{tmp + 1}, 8, v{vXo}')
    A(f's_lshr_b32 s36, s2, 1')
    A(f's_lshl_b32 s36, s36, 15')
    A(f's_and_b32 s32, s2, 1')
    A(f's_lshl_b32 s32, s32, 7')
    A(f's_add_u32 s36, s36, s32')
    A(f's_lshl_b32 s32, s{S_W}, 13')
    A(f's_add_u32 s36, s36, s32')
    A(f's_add_u32 s37, s36, 4096')
    A(f'v_bfe_u32 v{tmp}, v0, 1, 3')
    A(f'v_lshlrev_b32 v{vTo}, 19, v{tmp}')
    A(f'v_lshrrev_b32 v{tmp}, 5, v0')
    A(f'v_lshl_add_u32 v{vTo}, v{tmp}, 6, v{vTo}')
    A(f'v_and_b32 v{tmp}, 1, v0')
    A(f'v_lshl_add_u32 v{vTo}, v{tmp}, 5, v{vTo}')
    A(f'v_bfe_u32 v{tmp}, v0, 4, 1')
    A(f'v_lshl_add_u32 v{vTo}, v{tmp}, 4, v{vTo}')
    A(f's_and_b32 s38, s2, 15')
    A(f's_lshl_b32 s38, s38, 4')
    A(f's_lshr_b32 s32, s2, 4')
    A(f's_add_u32 s38, s38, s32')
    A(f's_lshl_b32 s38, s38, 8')
    A(f's_lshl_b32 s32, s{S_W}, 17')
    A(f's_add_u32 s38, s38, s32')
    A(f's_add_u32 s38, s38, {OFF_T}')
    A(f's_add_u32 s39, s38, 65536')
    A(f's_mov_b32 s30, 0x3f803f80')
    A(f's_mov_b32 s31, 0xffff0000')
    for z in range(2):
        A(f'v_mov_b32 v{TM[z]}, 0')
        A(f'v_mov_b32 v{TM[z] + 1}, 0')
    ST.take(A, 1)
    A('s_waitcnt vmcnt(0)')
    ST.take(A, 2)

    def ln(z):
        A = Asm()
        vXD, U, tmp = XD[z], YR[z], TM[z]
        sa, sb = 40 + 2 * z, 41 + 2 * z
        s1_, s2_ = tmp, tmp + 1
        for i in range(8):
            A(f'v_dot2_f32_bf16 v{s1_}, v{vXD + i}, s30, v{s1_}')
            A(f'v_dot2_f32_bf16 v{s2_}, v{vXD + i}, v{vXD + i}, v{s2_}')
        wave_reduce2(A, s1_, s2_)
        for i in range(8):
            A(f'v_lshlrev_b32 v{U + 2 * i}, 16, v{vXD + i}')
            A(f'v_and_b32 v{U + 2 * i + 1}, s31, v{vXD + i}')
        A(f'v_readlane_b32 s{sa}, v{s1_}, 63')
        A(f'v_readlane_b32 s{sb}, v{s2_}, 63')
        mu, va = tmp + 2, tmp + 4
        A(f'v_mov_b32 v{mu}, {fl(1 / 1024)}')
        A(f'v_mul_f32 v{va}, s{sb}, v{mu}')
        A(f'v_mul_f32 v{mu}, s{sa}, v{mu}')
        A(f'v_fma_f32 v{va}, -v{mu}, v{mu}, v{va}')
        A(f'v_max_f32 v{va}, 0, v{va}')
        A(f'v_cvt_pk_bf16_f32 v{mu}, v{mu}, v{va}')
        A(f'v_and_b32 v{va}, s31, v{mu}')
        A(f'v_lshlrev_b32 v{mu}, 16, v{mu}')
        A(f'v_add_f32 v{va}, {fl(1e-5)}, v{va}')
        A(f'v_cvt_pk_bf16_f32 v{va}, v{va}, v{va}')
        A(f'v_and_b32 v{va}, s31, v{va}')
        A(f'v_sqrt_f32 v{va}, v{va}')
        for i in range(8):
            A(f'v_pk_add_f32 v[{U + 2 * i}:{U + 2 * i + 1}], v[{U + 2 * i}:{U + 2 * i + 1}], v[{mu}:{mu + 1}] op_sel_hi:[1,0] neg_lo:[0,1] neg_hi:[0,1]')
        A(f'v_cvt_pk_bf16_f32 v{va}, v{va}, v{va}')
        A(f'v_and_b32 v{va}, s31, v{va}')
        A(f'v_rcp_f32 v{va}, v{va}')
        for i in range(8):
            A(f'v_cvt_pk_bf16_f32 v{vXD + i}, v{U + 2 * i}, v{U + 2 * i + 1}')
        for i in range(8):
            A(f'v_lshlrev_b32 v{U + 2 * i}, 16, v{vXD + i}')
            A(f'v_and_b32 v{U + 2 * i + 1}, s31, v{vXD + i}')
        for i in range(8):
            A(f'v_pk_mul_f32 v[{U + 2 * i}:{U + 2 * i + 1}], v[{U + 2 * i}:{U + 2 * i + 1}], v[{va}:{va + 1}] op_sel_hi:[1,0]')
        for i in range(8):
            A(f'v_cvt_pk_bf16_f32 v{vXD + i}, v{U + 2 * i}, v{U + 2 * i + 1}')
            if i == 3:
                A(f'ds_write_b128 v{vWr}, v[{vXD}:{vXD + 3}] offset:{z * 4 * XROW}')
        A(f'ds_write_b128 v{vWr}, v[{vXD + 4}:{vXD + 7}] offset:{1024 + z * 4 * XROW}')
        return A
    merge(A, [ln(0), ln(1)])
    A('s_waitcnt lgkmcnt(0)')
    for z in range(2):
        for kk in range(2):
            for t in range(2):
                d = XD[z] + 4 * kk + 2 * t
                A(f'ds_read_b64_tr_b16 v[{d}:{d + 1}], v{vTr} offset:{kk * 1024 + t * 256 + z * 4 * XROW}')
    A('s_barrier')
    for q in range(4):
        A(f'ds_read_b128 v[{XB + 4 * q}:{XB + 4 * q + 3}], v{vXr} offset:{128 * q}')
    for z in range(2):
        A(f's_waitcnt lgkmcnt({8 - 4 * z})') if z == 0 else A('s_waitcnt lgkmcnt(4)')
        for kk in range(2):
            for (Y, C) in ((YR[z], CA), (YI[z], SA)):
                A(f'v_mfma_f32_32x32x16_bf16 v[{Y}:{Y + 15}], v[{XD[z] + 4 * kk}:{XD[z] + 4 * kk + 3}], v[{C + 4 * kk}:{C + 4 * kk + 3}], ' + ('0' if kk == 0 else f'v[{Y}:{Y + 15}]'))
        if z == 0:
            pass
    for q in range(4):
        A(f's_waitcnt lgkmcnt({3 - q})')
        A(f'buffer_store_dwordx4 v[{XB + 4 * q}:{XB + 4 * q + 3}], v{vXo}, s[{SRD_O}:{SRD_O + 3}], s{36 + (q >> 1)} offen offset:{(q & 1) * 2048} {xs}')
    if after_xn:
        after_xn(A)
    ST.take(A, 3)
    A(f'v_cmp_eq_u32 vcc, 0, v0')

    def tw(z):
        A = Asm()
        tmp = TM[z]
        sa, sb = 40 + 2 * z, 41 + 2 * z
        ny = tmp + 2
        Yr, Yi = YR[z], YI[z]
        A(f'v_pk_add_f32 v[{ny}:{ny + 1}], v[{Yr}:{Yr + 1}], v[{Yr + 2}:{Yr + 3}]')
        for q in range(2, 8):
            A(f'v_pk_add_f32 v[{ny}:{ny + 1}], v[{ny}:{ny + 1}], v[{Yr + 2 * q}:{Yr + 2 * q + 1}]')
        A(f'v_sub_f32 v{ny}, v{ny}, v{ny + 1}')
        PR, PI = XD[z], XB + 8 * z
        for q in range(8):
            yr, yi, tr, ti = (f'v[{x + 2 * q}:{x + 2 * q + 1}]' for x in (Yr, Yi, TR, TI))
            a0 = tmp + 4 if q & 1 else tmp
            t0 = f'v[{a0}:{a0 + 1}]'
            A(f'v_pk_mul_f32 {t0}, {yr}, {tr}')
            A(f'v_pk_mul_f32 {yr}, {yr}, {ti}')
            A(f'v_pk_fma_f32 {t0}, {yi}, {ti}, {t0} neg_lo:[1,0,0] neg_hi:[1,0,0]')
            A(f'v_pk_fma_f32 {yr}, {yi}, {tr}, {yr}')
            A(f'v_cvt_pk_bf16_f32 v{PR + q}, v{a0}, v{a0 + 1}')
            A(f'v_cvt_pk_bf16_f32 v{PI + q}, v{Yr + 2 * q}, v{Yr + 2 * q + 1}')
            if q == 0:
                A(f'v_readlane_b32 s{sa}, v{ny}, 0')
                A(f'v_readlane_b32 s{sb}, v{ny}, 32')
        X = Yi
        seq = [(CB, PR, 0), (SB_, PI, 0), (CB, PR, 1), (SB_, PI, 1)]
        for n, (c, d, kk) in enumerate(seq):
            A(f'v_mfma_f32_32x32x16_bf16 v[{X}:{X + 15}], v[{c + 4 * kk}:{c + 4 * kk + 3}], v[{d + 4 * kk}:{d + 4 * kk + 3}], ' + ('0' if n == 0 else f'v[{X}:{X + 15}]'))
        A(f'v_mov_b32 v{ny}, s{sa}')
        A(f'v_add_f32 v{ny}, s{sb}, v{ny}')
        return A

    def pw(z):
        A = Asm()
        X, Yr, ny = YI[z], YR[z], TM[z] + 2
        A(f'v_cndmask_b32 v{X + 1}, v{X + 1}, v{ny}, vcc')
        for q in range(8):
            A(f'v_cvt_pk_bf16_f32 v{Yr + q}, v{X + 2 * q}, v{X + 2 * q + 1}')
            A(f'ds_write_b32 v{vPw}, v{Yr + q} offset:{(q >> 1) * 512 + (q & 1) * 128 + z * (8192 + 64)}')
        return A
    t0, t1 = tw(0), tw(1)
    A.lines += t0.lines
    A.lines += t1.lines
    A.lines += pw(0).lines
    A.lines += pw(1).lines
    for t in range(1, 4):
        A(f'v_add_u32 v{tmp + t}, {(16 * (t & 1) + 2 * (t >> 1)) * 4}, v{vPr}')
    A('s_waitcnt lgkmcnt(0)')
    A('s_barrier')
    ST.take(A, 4)
    for z in range(2):
        for t in range(4):
            A(f'ds_read2st64_b32 v[{XD[z] + 2 * t}:{XD[z] + 2 * t + 1}], v{tmp + t if t else vPr} offset0:{z} offset1:{8 + z}')
    for z in range(2):
        for t in range(4):
            A(f's_waitcnt lgkmcnt({7 - 4 * z - t})')
            A(f'v_mfma_f32_16x16x16_bf16 v[{YI[z] + 4 * t}:{YI[z] + 4 * t + 3}], v[{XD[z] + 2 * t}:{XD[z] + 2 * t + 1}], v[{M8}:{M8 + 1}], 0')
    for z in range(2):
        for t in range(4):
            A(f'v_cvt_pk_bf16_f32 v{YR[z] + 2 * t}, v{YI[z] + 4 * t}, v{YI[z] + 4 * t + 1}')
            A(f'v_cvt_pk_bf16_f32 v{YR[z] + 2 * t + 1}, v{YI[z] + 4 * t + 2}, v{YI[z] + 4 * t + 3}')
            if t & 1:
                A(f'buffer_store_dwordx4 v[{YR[z] + 2 * t - 2}:{YR[z] + 2 * t + 1}], v{vTo}, s[{SRD_O}:{SRD_O + 3}], s{38 + z} offen offset:{(t >> 1) * 128} {ts}')
    ST.take(A, 5)


VROW = 4096 + 64
GRP = 16 * VROW
XS_OFF = 2 * GRP
YS_OFF = XS_OFF + 4096
MID_LDS = YS_OFF + 4096


def mid_body(A, cfg, wait_t=None, done=None):
    ST = Stamps(cfg.get('stamp'), cfg.get('kidx1', 0))
    t2s = cfg.get('t2store', '')
    S_W, S_WR, S_WI, S_WS = 5, 8, 10, 14
    S_OM, S_K1A, S_GB = 6, 7, 12
    SRD_T, SRD_R, SRD_I = 16, 20, 24
    A(f's_load_dwordx4 s[{S_WR}:{S_WR + 3}], s[0:1], {KA_WR}')
    A(f's_load_dwordx2 s[{S_WS}:{S_WS + 1}], s[0:1], {KA_WS}')
    A('v_lshrrev_b32 v1, 6, v0')
    A('v_and_b32 v0, 63, v0')
    A(f'v_readfirstlane_b32 s{S_W}, v1')
    A(f's_and_b32 s{S_OM}, s{S_W}, 3')
    A(f's_sub_u32 s28, 8, s4')
    A(f's_cmp_eq_u32 s4, 0')
    A(f's_cselect_b32 s28, 4, s28')
    A(f's_cmp_ge_u32 s{S_W}, 4')
    A(f's_cselect_b32 s{S_K1A}, s28, s4')
    A(f's_cselect_b32 s{S_GB}, {GRP}, 0')
    R = Alloc(1, 192)
    vg, vi = R(), R()
    vT2 = R()
    vRd = R(4)
    vP = R(8)
    vR2, vW2 = R(2), R(2)
    vk, vkp = R(), R()
    SW = R(8)
    B1R, B1I, B4R, B4I = R(4, 4), R(4, 4), R(4, 4), R(4, 4)
    WR, WI = R(32, 4), R(32, 4)
    FR = [R(16, 4), R(16, 4)]
    AC = R(32, 4)
    tmp = R(16, 4)
    A2, B3 = 0, 32
    A(f'v_lshrrev_b32 v{vg}, 4, v0')
    A(f'v_and_b32 v{vi}, 15, v0')
    A(f'v_bfe_u32 v{tmp + 1}, v0, 2, 2')
    A(f'v_xor_b32 v{tmp + 1}, v{tmp + 1}, v{vg}')
    A(f'v_lshlrev_b32 v{tmp + 1}, 6, v{tmp + 1}')
    A(f'v_lshl_add_u32 v{tmp + 1}, v{vg}, 8, v{tmp + 1}')
    A(f'v_and_b32 v{tmp + 2}, 3, v0')
    A(f'v_lshl_add_u32 v{tmp + 1}, v{tmp + 2}, 4, v{tmp + 1}')
    A(f's_lshl_b32 s29, s{S_K1A}, 19')
    A(f's_lshl_b32 s30, s3, 16')
    A(f's_add_u32 s29, s29, s30')
    A(f's_lshl_b32 s30, s{S_OM}, 14')
    A(f's_add_u32 s29, s29, s30')
    A(f's_add_u32 s29, s29, {OFF_T}')
    A(f's_mul_i32 s30, s{S_OM}, {4 * VROW}')
    A(f's_add_u32 s30, s30, s{S_GB}')
    A(f's_lshl_b32 s28, s{S_OM}, 5')
    A(f's_add_u32 s28, s28, s{S_K1A}')
    A(f'v_lshl_add_u32 v{tmp}, v{vg}, 9, s28')
    A(f'v_mul_u32_u24 v{tmp}, 1026, v{tmp}')
    A(f'v_lshl_add_u32 v{tmp}, v{vi}, 3, v{tmp}')
    A(f's_lshl_b32 s28, s3, 7')
    A(f'v_add_u32 v{tmp}, s28, v{tmp}')
    A('s_waitcnt lgkmcnt(0)')
    make_srd(A, SRD_T, S_WS, 12 << 20)

    def load_t():
        for vv in range(4):
            A(f's_add_u32 m0, s30, {vv * VROW}')
            A(f's_add_u32 s31, s29, {vv * 4096}')
            for i in range(4):
                A(f'buffer_load_dwordx4 v{tmp + 1}, s[{SRD_T}:{SRD_T + 3}], s31 offen offset:{i * 1024} lds')
    if not wait_t:
        load_t()
    make_srd(A, SRD_R, S_WR, 2048 * 513 * 2)
    make_srd(A, SRD_I, S_WI, 2048 * 513 * 2)
    wl = []
    for ee in range(4):
        for rp in range(4):
            d = (ee * 4 + rp) * 2
            wl.append([f's_mov_b32 s31, {ee * 8208 + rp * 131328}',
                       f'buffer_load_dwordx2 v[{WR + d}:{WR + d + 1}], v{tmp}, s[{SRD_R}:{SRD_R + 3}], s31 offen'])
            wl.append([f'buffer_load_dwordx2 v[{WI + d}:{WI + d + 1}], v{tmp}, s[{SRD_I}:{SRD_I + 3}], s31 offen'])

    c0, c1, c2, c3 = AC, AC + 1, AC + 2, AC + 3
    fi, fg = AC + 4, AC + 5
    A(f'v_cvt_f32_u32 v{fi}, v{vi}')
    A(f'v_cvt_f32_u32 v{fg}, v{vg}')
    cnt = [0]

    def quad(angf, dst):
        o = 10 + 4 * (cnt[0] & 3)
        cnt[0] += 1
        C, S_, T = AC + o, AC + o + 1, AC + o + 2
        angf(T)
        A(f'v_cos_f32 v{C}, v{T}')
        A(f'v_sin_f32 v{S_}, v{T}')
        if wl:
            for l in wl.pop(0):
                A(l)
        pend.append((C, S_, T, dst))
        if len(pend) > 1:
            fin(pend.pop(0))
    pend = []

    def fin(p):
        C, S_, T, dst = p
        m = {'c': f'v{C}', 's': f'v{S_}', 'n': f'-v{S_}'}
        k = 0
        for (lo, hi, kind, reg) in dst:
            if kind == 'v':
                A(f'v_cvt_pk_bf16_f32 v{reg}, {m[lo]}, {m[hi]}')
            else:
                A(f'v_cvt_pk_bf16_f32 v{T + k}, {m[lo]}, {m[hi]}')
                k += 1
        k = 0
        for (lo, hi, kind, reg) in dst:
            if kind == 'a':
                A(f'v_accvgpr_write_b32 a{reg}, v{T + k}')
                k += 1
    f16, base = AC + 6, AC + 7
    A(f'v_mul_f32 v{f16}, {fl(1 / 16)}, v{fi}')
    A(f'v_add_f32 v{base}, v{fg}, v{fg}')
    A(f'v_mul_f32 v{base}, v{base}, v{f16}')
    for q in range(4):
        quad(lambda T: A(f'v_fmamk_f32 v{T}, v{f16}, {fl(8 * (q >> 1) + (q & 1))}, v{base}'),
             [('c', 's', 'v', B1R + q), ('n', 'c', 'v', B1I + q), ('c', 'n', 'v', B4R + q), ('s', 'c', 'v', B4I + q)])
    ef, g2 = AC + 8, AC + 9
    A(f's_lshl_b32 s28, s{S_OM}, 2')
    A(f'v_lshl_add_u32 v{ef}, v{vi}, 4, s28')
    A(f'v_cvt_f32_u32 v{ef}, v{ef}')
    A(f'v_mul_f32 v{ef}, {fl(1 / 256)}, v{ef}')
    A(f'v_add_f32 v{g2}, v{fg}, v{fg}')
    for ee in range(4):
        if ee:
            A(f'v_add_f32 v{ef}, {fl(1 / 256)}, v{ef}')
        A(f'v_mul_f32 v{base}, v{g2}, v{ef}')
        for q in range(4):
            quad(lambda T: A(f'v_fmamk_f32 v{T}, v{ef}, {fl(8 * (q >> 1) + (q & 1))}, v{base}'),
                 [('c', 's', 'a', A2 + ee * 8 + q), ('n', 'c', 'a', A2 + ee * 8 + 4 + q)])
    A(f'v_lshl_add_u32 v{base}, v{vg}, 6, s28')
    A(f'v_cvt_f32_u32 v{base}, v{base}')
    A(f'v_mul_f32 v{ef}, {fl(1 / 256)}, v{fi}')
    A(f'v_mul_f32 v{base}, v{base}, v{ef}')
    for ee in range(4):
        for rp in range(4):
            quad(lambda T: A(f'v_fmamk_f32 v{T}, v{ef}, {fl(ee + 16 * rp)}, v{base}'),
                 [('c', 'n', 'a', B3 + ee * 8 + rp), ('s', 'c', 'a', B3 + ee * 8 + 4 + rp)])
    fin(pend.pop(0))
    assert not wl
    LG = A.newlabel('mid_nogather')
    A('s_cmp_lg_u32 s3, 0')
    A(f's_cbranch_scc1 {LG}')
    A(f's_lshl_b32 s28, s{S_OM}, 6')
    A(f'v_add_u32 v{vk}, s28, v0')
    A(f'v_lshl_add_u32 v{tmp + 2}, v{vk}, 3, s{S_K1A}')
    A(f'v_sub_u32 v{tmp + 3}, 2048, v{tmp + 2}')
    A(f'v_and_b32 v{tmp + 3}, 2047, v{tmp + 3}')
    A(f'v_lshrrev_b32 v{vkp}, 3, v{tmp + 3}')
    A(f'v_mul_u32_u24 v{tmp + 2}, 1026, v{tmp + 2}')
    A(f'v_mul_u32_u24 v{tmp + 3}, 1026, v{tmp + 3}')
    for z in range(2):
        for c, off in enumerate((0, 1024)):
            A(f'buffer_load_ushort v{SW + 4 * z + 2 * c}, v{tmp + 2 + z}, s[{SRD_R}:{SRD_R + 3}], 0 offen offset:{off}')
            A(f'buffer_load_ushort v{SW + 4 * z + 2 * c + 1}, v{tmp + 2 + z}, s[{SRD_I}:{SRD_I + 3}], 0 offen offset:{off}')
    A(f's_lshr_b32 s28, s{S_W}, 2')
    A(f's_xor_b32 s31, s28, 1')
    A(f's_cmp_eq_u32 s4, 0')
    A(f's_cselect_b32 s31, s28, s31')
    A(f's_lshl_b32 s28, s28, 11')
    A(f's_lshl_b32 s31, s31, 11')
    A(f's_add_u32 s28, s28, {XS_OFF}')
    A(f's_add_u32 s31, s31, {XS_OFF}')
    A(f'v_lshl_add_u32 v{vk}, v{vk}, 3, s28')
    A(f'v_lshl_add_u32 v{vkp}, v{vkp}, 3, s31')
    A(f's_mov_b32 s13, s28')
    A.label(LG)
    A(f'v_bfe_u32 v{tmp + 4}, v0, 3, 1')
    A(f'v_lshl_add_u32 v{tmp + 4}, v{vg}, 1, v{tmp + 4}')
    A(f'v_and_b32 v{tmp + 5}, 7, v0')
    A(f'v_lshlrev_b32 v{tmp + 5}, 3, v{tmp + 5}')
    A(f'v_and_b32 v{tmp + 6}, 3, v{tmp + 4}')
    A(f'v_lshl_add_u32 v{tmp + 6}, v{tmp + 6}, 6, v{tmp + 5}')
    A(f'v_lshl_add_u32 v{tmp + 6}, v{tmp + 4}, 8, v{tmp + 6}')
    A(f'v_add_u32 v{tmp + 6}, s30, v{tmp + 6}')
    A(f'v_lshrrev_b32 v{tmp + 8}, 1, v{vi}')
    A(f'v_xor_b32 v{tmp + 8}, v{tmp + 8}, v{vg}')
    A(f'v_lshlrev_b32 v{tmp + 8}, 3, v{tmp + 8}')
    A(f'v_and_b32 v{tmp + 7}, 3, v{vi}')
    A(f'v_lshl_add_u32 v{tmp + 7}, v{tmp + 7}, 6, v{tmp + 8}')
    A(f'v_lshl_add_u32 v{tmp + 7}, v{vi}, 8, v{tmp + 7}')
    A(f'v_add_u32 v{tmp + 7}, s30, v{tmp + 7}')
    for r in range(4):
        A(f'v_xor_b32 v{vRd + r}, {r << 6}, v{tmp + 6}')
        for ro in range(2):
            A(f'v_xor_b32 v{vP + 2 * r + ro}, {(r << 6) | (ro << 5)}, v{tmp + 7}')
    A(f's_lshl_b32 s28, s{S_OM}, 10')
    A(f's_add_u32 s28, s28, s{S_GB}')
    A(f's_lshl_b32 s35, s{S_OM}, 4')
    A(f'v_mul_u32_u24 v{vR2}, {VROW}, v{tmp + 4}')
    A(f'v_add3_u32 v{vR2}, v{vR2}, v{tmp + 5}, s28')
    A(f'v_xor_b32 v{vR2}, s35, v{vR2}')
    A(f'v_xor_b32 v{vR2 + 1}, 8, v{vR2}')
    A(f'v_mul_u32_u24 v{vW2}, {VROW}, v{vi}')
    A(f'v_add3_u32 v{vW2}, v{vW2}, v{tmp + 8}, s28')
    A(f'v_xor_b32 v{vW2 + 1}, 32, v{vW2}')
    A(f'v_lshlrev_b32 v{vT2}, 20, v{vg}')
    A(f'v_lshl_add_u32 v{vT2}, v{vi}, 4, v{vT2}')
    A(f's_lshl_b32 s32, s{S_OM}, 16')
    A(f's_lshl_b32 s33, s{S_K1A}, 11')
    A(f's_add_u32 s32, s32, s33')
    A(f's_lshl_b32 s33, s3, 8')
    A(f's_add_u32 s32, s32, s33')
    A(f's_add_u32 s32, s32, {OFF_T2}')
    A(f's_mov_b32 s36, 0xffff0000')
    ST.take(A, 1)
    if wait_t:
        wait_t(A)
        load_t()
        A('s_waitcnt vmcnt(0)')
    else:
        A('s_waitcnt vmcnt(32)')
    if cfg.get('rep'):
        A('s_mov_b32 s40, 0')
        A.label('mid_rep')
        A('s_waitcnt vmcnt(0)')
        A('s_barrier')
    ST.take(A, 2)

    def rd1(r):
        for vv in range(4):
            for t in range(2):
                d = FR[r & 1] + 4 * vv + 2 * t
                A(f'ds_read_b64_tr_b16 v[{d}:{d + 1}], v{vRd + r} offset:{vv * VROW + t * 2048}')
    rd1(0)
    for r in range(4):
        if r < 3:
            rd1(r + 1)
        nw = 8 if r > 0 else 0
        for vv in range(4):
            f = FR[r & 1] + 4 * vv
            A(f's_waitcnt lgkmcnt({min(15, (8 if r < 3 else 0) + nw + 6 - 2 * vv)})')
            A(f'v_mfma_f32_16x16x32_bf16 v[{AC + 8 * vv}:{AC + 8 * vv + 3}], v[{f}:{f + 3}], v[{B1R}:{B1R + 3}], 0')
            A(f'v_mfma_f32_16x16x32_bf16 v[{AC + 8 * vv + 4}:{AC + 8 * vv + 7}], v[{f}:{f + 3}], v[{B1I}:{B1I + 3}], 0')
        for vv in range(4):
            a = AC + 8 * vv
            p = tmp + 4 * vv
            for q in range(4):
                A(f'v_cvt_pk_bf16_f32 v{p + q}, v{a + 2 * q}, v{a + 2 * q + 1}')
            for ro in range(2):
                A(f'ds_write_b64 v{vP + 2 * r + ro}, v[{p + 2 * ro}:{p + 2 * ro + 1}] offset:{vv * VROW}')
    for r in range(4):
        A(f'v_xor_b32 v{vP + 2 * r}, s35, v{vRd + r}')
        A(f'v_xor_b32 v{vP + 2 * r + 1}, 8, v{vP + 2 * r}')
    A('s_waitcnt vmcnt(0) lgkmcnt(0)')
    A('s_barrier')
    ST.take(A, 3)

    def rd2(r):
        for ee in range(4):
            for t in range(2):
                d = FR[r & 1] + 4 * ee + 2 * t
                A(f'ds_read_b64_tr_b16 v[{d}:{d + 1}], v{vR2 + (ee >> 1)} offset:{t * 8 * VROW + ee * 256 + ((r ^ ee) & 3) * 64}')
    rd2(0)
    for r in range(4):
        if r < 3:
            rd2(r + 1)
        nw = 8 if r > 0 else 0
        for ee in range(4):
            f = FR[r & 1] + 4 * ee
            A(f's_waitcnt lgkmcnt({min(15, (8 if r < 3 else 0) + nw + 6 - 2 * ee)})')
            A(f'v_mfma_f32_16x16x32_bf16 v[{AC + 8 * ee}:{AC + 8 * ee + 3}], a[{A2 + 8 * ee}:{A2 + 8 * ee + 3}], v[{f}:{f + 3}], 0')
            A(f'v_mfma_f32_16x16x32_bf16 v[{AC + 8 * ee + 4}:{AC + 8 * ee + 7}], a[{A2 + 8 * ee + 4}:{A2 + 8 * ee + 7}], v[{f}:{f + 3}], 0')
        if r == 0:
            LS1 = A.newlabel('mid_nocol0a')
            A('s_cmp_lg_u32 s3, 0')
            A(f's_cbranch_scc1 {LS1}')
            A(f's_lshl_b32 s28, s{S_OM}, 5')
            A(f's_add_u32 s28, s28, s13')
            A(f'v_lshl_add_u32 v{tmp}, v{vg}, 9, s28')
            A('s_mov_b32 exec_lo, 0x00010001')
            A('s_mov_b32 exec_hi, 0x00010001')
            for ee in range(4):
                for rp in range(4):
                    o = ee * 2 + rp * 32
                    A(f'ds_write2_b32 v{tmp}, v{AC + 8 * ee + rp}, v{AC + 8 * ee + 4 + rp} offset0:{o} offset1:{o + 1}')
            A('s_mov_b64 exec, -1')
            A('s_waitcnt lgkmcnt(0)')
            A('s_barrier')
            xo, xp = tmp + 2, tmp + 4
            A(f'ds_read_b64 v[{xo}:{xo + 1}], v{vk}')
            A(f'ds_read_b64 v[{xp}:{xp + 1}], v{vkp}')
            for i in range(8):
                A(f'v_lshlrev_b32 v{SW + i}, 16, v{SW + i}')
            A(f'v_add_f32 v{SW}, v{SW}, v{SW + 4}')
            A(f'v_sub_f32 v{SW + 1}, v{SW + 1}, v{SW + 5}')
            A(f'v_add_f32 v{SW + 2}, v{SW + 2}, v{SW + 6}')
            A(f'v_sub_f32 v{SW + 3}, v{SW + 3}, v{SW + 7}')
            A(f'v_add_f32 v{SW + 4}, v{SW}, v{SW + 2}')
            A(f'v_add_f32 v{SW + 5}, v{SW + 1}, v{SW + 3}')
            A(f'v_sub_f32 v{SW + 6}, v{SW}, v{SW + 2}')
            A(f'v_sub_f32 v{SW + 7}, v{SW + 1}, v{SW + 3}')
            A('s_waitcnt lgkmcnt(0)')
            y = tmp + 6
            A(f'v_mul_f32 v{y}, v{xo}, v{SW + 4}')
            A(f'v_mul_f32 v{y + 1}, v{xo}, v{SW + 5}')
            A(f'v_fma_f32 v{y}, -v{xo + 1}, v{SW + 5}, v{y}')
            A(f'v_fma_f32 v{y + 1}, v{xo + 1}, v{SW + 4}, v{y + 1}')
            A(f'v_fma_f32 v{y}, v{xp}, v{SW + 6}, v{y}')
            A(f'v_fma_f32 v{y + 1}, v{xp}, v{SW + 7}, v{y + 1}')
            A(f'v_fma_f32 v{y}, v{xp + 1}, v{SW + 7}, v{y}')
            A(f'v_fma_f32 v{y + 1}, -v{xp + 1}, v{SW + 6}, v{y + 1}')
            A(f'v_mul_f32 v{y}, {fl(0.125)}, v{y}')
            A(f'v_mul_f32 v{y + 1}, {fl(0.125)}, v{y + 1}')
            A(f'v_cvt_pk_bf16_f32 v{y}, v{y}, v{y + 1}')
            A(f'ds_write_b32 v{vk}, v{y} offset:{YS_OFF - XS_OFF}')
            A(f'v_mov_b32 v{vk}, v{tmp}')
            A('s_waitcnt lgkmcnt(0)')
            A('s_barrier')
            A.label(LS1)
        for ee in range(4):
            a = AC + 8 * ee
            w = tmp + 8 * (ee & 1)
            for rp in range(4):
                src = (ee * 4 + rp) * 2 + (r >> 1)
                for (W_, o) in ((WR, 0), (WI, 4)):
                    if r & 1:
                        A(f'v_and_b32 v{w + o + rp}, s36, v{W_ + src}')
                    else:
                        A(f'v_lshlrev_b32 v{w + o + rp}, 16, v{W_ + src}')
            f = FR[r & 1] + 4 * ee
            for h in range(2):
                xr, xi = f'v[{a + 2 * h}:{a + 2 * h + 1}]', f'v[{a + 4 + 2 * h}:{a + 5 + 2 * h}]'
                wr, wi = f'v[{w + 2 * h}:{w + 2 * h + 1}]', f'v[{w + 4 + 2 * h}:{w + 5 + 2 * h}]'
                t0 = f'v[{f + 2 * h}:{f + 2 * h + 1}]'
                A(f'v_pk_mul_f32 {t0}, {xr}, {wr}')
                A(f'v_pk_mul_f32 {xr}, {xr}, {wi}')
                A(f'v_pk_fma_f32 {t0}, {xi}, {wi}, {t0} neg_lo:[1,0,0] neg_hi:[1,0,0]')
                A(f'v_pk_fma_f32 {xr}, {xi}, {wr}, {xr}')
            for rp in range(4):
                A(f'v_cvt_pk_bf16_f32 v{f + rp}, v{f + rp}, v{a + rp}')
        if r == 0:
            LS2 = A.newlabel('mid_nocol0b')
            A('s_cmp_lg_u32 s3, 0')
            A(f's_cbranch_scc1 {LS2}')
            A('s_mov_b32 exec_lo, 0x00010001')
            A('s_mov_b32 exec_hi, 0x00010001')
            for ee in range(4):
                for rp in range(4):
                    A(f'ds_read_b32 v{FR[0] + 4 * ee + rp}, v{vk} offset:{YS_OFF - XS_OFF + ee * 8 + rp * 128}')
            A('s_waitcnt lgkmcnt(0)')
            A('s_mov_b64 exec, -1')
            A.label(LS2)
        for ee in range(4):
            f = FR[r & 1] + 4 * ee
            A(f'v_mfma_f32_16x16x32_bf16 v[{AC + 8 * ee}:{AC + 8 * ee + 3}], v[{f}:{f + 3}], a[{B3 + 8 * ee}:{B3 + 8 * ee + 3}], 0')
            A(f'v_mfma_f32_16x16x32_bf16 v[{AC + 8 * ee + 4}:{AC + 8 * ee + 7}], v[{f}:{f + 3}], a[{B3 + 8 * ee + 4}:{B3 + 8 * ee + 7}], 0')
        for ee in range(4):
            a = AC + 8 * ee
            p = tmp + 4 * ee
            for q in range(4):
                A(f'v_cvt_pk_bf16_f32 v{p + q}, v{a + 2 * q}, v{a + 2 * q + 1}')
            o = ee * 256 + ((r ^ ee) & 3) * 64
            for ro in range(2):
                A(f'ds_write_b64 v{vW2 + ro}, v[{p + 2 * ro}:{p + 2 * ro + 1}] offset:{o}')
    A('s_waitcnt lgkmcnt(0)')
    A('s_barrier')
    ST.take(A, 4)

    def rd3(vv):
        for r in range(4):
            for t in range(2):
                d = FR[vv & 1] + 4 * r + 2 * t
                A(f'ds_read_b64_tr_b16 v[{d}:{d + 1}], v{vP + 2 * r + (vv >> 1)} offset:{vv * VROW + t * 2048}')
    rd3(0)
    for vv in range(4):
        if vv < 3:
            rd3(vv + 1)
        for r in range(4):
            f = FR[vv & 1] + 4 * r
            A(f's_waitcnt lgkmcnt({(8 if vv < 3 else 0) + 6 - 2 * r})')
            A(f'v_mfma_f32_16x16x32_bf16 v[{AC + 8 * r}:{AC + 8 * r + 3}], v[{B4R}:{B4R + 3}], v[{f}:{f + 3}], 0')
            A(f'v_mfma_f32_16x16x32_bf16 v[{AC + 8 * r + 4}:{AC + 8 * r + 7}], v[{B4I}:{B4I + 3}], v[{f}:{f + 3}], 0')
        p = WR + 16 * vv
        for q in range(4):
            for r in range(4):
                A(f'v_cvt_pk_bf16_f32 v{p + 4 * q + r}, v{AC + 8 * r + q}, v{AC + 8 * r + 4 + q}')
            A(f's_add_u32 s33, s32, {vv * 16384 + q * 16 * 16384}')
            A(f'buffer_store_dwordx4 v[{p + 4 * q}:{p + 4 * q + 3}], v{vT2}, s[{SRD_T}:{SRD_T + 3}], s33 offen {t2s}')
    ST.take(A, 5)
    if cfg.get('rep'):
        A('s_add_u32 s40, s40, 1')
        A('s_cmp_lt_u32 s40, 2')
        A('s_cbranch_scc1 mid_rep')
    if done:
        done(A)
    ST.flush(A, [0, 1, 2, 3, 4, 5, 6], S_WS, S_W)


RROW = 1024 + 32
IFFT_LDS = 16 * RROW


def ifft_consts(A, S_W, S_S2, RG, LB):
    M8, BC, BS, BN, TR, TI, CC, CN, vSg, vWr, vRd, vIm, vSo, tmp = (RG[k] for k in (
        'M8', 'BC', 'BS', 'BN', 'TR', 'TI', 'CC', 'CN', 'vSg', 'vWr', 'vRd', 'vIm', 'vSo', 'tmp'))
    vh, vc, vf, vb = tmp + 6, tmp + 7, tmp + 8, tmp + 9
    A(f'v_bfe_u32 v{vf}, v0, 1, 3')
    A(f'v_lshlrev_b32 v{vf}, 8, v{vf}')
    A(f'v_add_u32 v{vf}, s{S_S2}, v{vf}')
    A(f'v_cvt_f32_u32 v{vf}, v{vf}')
    A(f'v_mul_f32 v{vf}, {fl(1 / 2048)}, v{vf}')
    A(f'v_lshrrev_b32 v{vh}, 4, v0')
    A(f'v_lshlrev_b32 v{vh}, 1, v{vh}')
    A(f'v_cvt_f32_u32 v{vh}, v{vh}')
    A(f'v_and_b32 v{vc}, 1, v0')
    A(f'v_cvt_f32_u32 v{vc}, v{vc}')
    A(f'v_mul_f32 v{vb}, v{vh}, v{vf}')
    A(f'v_fmac_f32 v{vb}, {fl(-0.25)}, v{vc}')
    A(f'v_add_f32 v{vh}, v{vb}, v{vf}')
    A(f'v_cos_f32 v{tmp}, v{vb}')
    A(f'v_sin_f32 v{tmp + 1}, -v{vb}')
    A(f'v_cos_f32 v{tmp + 2}, v{vh}')
    A(f'v_sin_f32 v{tmp + 3}, -v{vh}')
    A(f'v_fma_f32 v{vSg}, v{vc}, -2.0, 1.0')
    A(f'v_cmp_gt_u32 vcc, 32, v0')
    for i in range(4):
        A(f'v_mul_f32 v{tmp + i}, {fl(2.0 ** -20)}, v{tmp + i}')
    A(f'v_cndmask_b32 v{vSg}, 0, v{vSg}, vcc')
    A(f'v_cvt_pk_bf16_f32 v{M8}, v{tmp}, v{tmp + 1}')
    A(f'v_cvt_pk_bf16_f32 v{M8 + 1}, v{tmp + 2}, v{tmp + 3}')
    A(f'v_and_b32 v{vb}, 0x13, v0')
    A(f'v_bfe_u32 v{vf}, v0, 2, 1')
    A(f'v_lshl_or_b32 v{vb}, v{vf}, 3, v{vb}')
    A(f'v_bfe_u32 v{vf}, v0, 3, 1')
    A(f'v_lshl_or_b32 v{vb}, v{vf}, 2, v{vb}')
    A(f'v_cvt_f32_u32 v{vf}, v{vb}')
    A(f'v_mul_f32 v{vf}, {fl(1 / 32)}, v{vf}')
    A(f'v_lshrrev_b32 v{vh}, 5, v0')
    A(f'v_cvt_f32_u32 v{vh}, v{vh}')
    A(f'v_mul_f32 v{vb}, {fl(8.0)}, v{vh}')
    A(f'v_mul_f32 v{vb}, v{vb}, v{vf}')
    for p in range(4):
        A(f'v_fmamk_f32 v{tmp}, v{vf}, {fl(2 * p)}, v{vb}')
        A(f'v_fmamk_f32 v{tmp + 1}, v{vf}, {fl(2 * p + 1)}, v{vb}')
        A(f'v_cos_f32 v{tmp + 2}, v{tmp}')
        A(f'v_cos_f32 v{tmp + 3}, v{tmp + 1}')
        A(f'v_sin_f32 v{tmp + 4}, v{tmp}')
        A(f'v_sin_f32 v{tmp + 5}, v{tmp + 1}')
        A(f'v_cvt_pk_bf16_f32 v{BC + p}, v{tmp + 2}, v{tmp + 3}')
        A(f'v_cvt_pk_bf16_f32 v{BS + p}, v{tmp + 4}, v{tmp + 5}')
        A(f'v_cvt_pk_bf16_f32 v{BN + p}, -v{tmp + 4}, -v{tmp + 5}')
    A(f'v_mul_f32 v{vf}, {fl(1 / 32)}, v{vf}')
    A(f'v_mul_f32 v{vb}, {fl(4.0)}, v{vh}')
    A(f'v_mul_f32 v{vb}, v{vb}, v{vf}')
    for i in range(16):
        t = tmp + (i & 1)
        A(f'v_fmamk_f32 v{t}, v{vf}, {fl(8 * (i >> 2) + (i & 3))}, v{vb}')
        A(f'v_cos_f32 v{TR + i}, v{t}')
        A(f'v_sin_f32 v{TI + i}, v{t}')
    A(f'v_and_b32 v{vf}, 31, v0')
    A(f'v_cvt_f32_u32 v{vf}, v{vf}')
    A(f'v_mul_f32 v{vf}, {fl(1 / 32)}, v{vf}')
    A(f'v_mul_f32 v{vb}, {fl(4.0)}, v{vh}')
    A(f'v_mul_f32 v{vb}, v{vb}, v{vf}')
    trig_pairs(A, CC, CN, lambda i, r: A(f'v_fmamk_f32 v{r}, v{vf}, {fl(16 * (i >> 3) + 8 * ((i >> 2) & 1) + (i & 3))}, v{vb}'), 16, tmp, True)
    A(f'v_and_b32 v{tmp}, 15, v0')
    A(f'v_mul_u32_u24 v{vWr}, {RROW}, v{tmp}')
    A(f'v_lshrrev_b32 v{tmp + 1}, 1, v{tmp}')
    A(f'v_and_b32 v{tmp + 1}, 2, v{tmp + 1}')
    A(f'v_lshrrev_b32 v{tmp + 2}, 4, v0')
    A(f'v_xor_b32 v{tmp + 1}, v{tmp + 1}, v{tmp + 2}')
    A(f'v_lshl_add_u32 v{vWr}, v{tmp + 1}, 3, v{vWr}')
    A(f's_lshl_b32 s28, s{S_W}, 8')
    A(f's_add_u32 s28, s28, {LB}')
    A(f'v_add_u32 v{vWr}, s28, v{vWr}')
    A(f's_mul_i32 s28, s{S_W}, {2 * RROW}')
    A(f's_add_u32 s28, s28, {LB}')
    A(f's_lshr_b32 s29, s{S_W}, 1')
    A(f's_lshl_b32 s29, s29, 4')
    A(f'v_and_b32 v{tmp}, 31, v0')
    A(f'v_lshlrev_b32 v{tmp}, 5, v{tmp}')
    A(f'v_lshrrev_b32 v{tmp + 1}, 5, v0')
    A(f'v_lshlrev_b32 v{tmp + 1}, 4, v{tmp + 1}')
    A(f'v_xor_b32 v{tmp + 1}, s29, v{tmp + 1}')
    A(f'v_add3_u32 v{vRd}, v{tmp}, v{tmp + 1}, s28')
    A(f's_add_u32 s28, s28, s29')
    A(f'v_mov_b32 v{vIm}, s28')
    A(f'v_and_b32 v{tmp}, 15, v0')
    A(f'v_lshlrev_b32 v{vSo}, 6, v{tmp}')
    A(f'v_bfe_u32 v{tmp}, v0, 4, 1')
    A(f'v_lshl_add_u32 v{vSo}, v{tmp}, 5, v{vSo}')
    A(f'v_lshrrev_b32 v{tmp}, 5, v0')
    A(f'v_lshl_add_u32 v{vSo}, v{tmp}, 4, v{vSo}')


def ifft_regs(start):
    R = Alloc(start, 256)
    RG = dict(M8=R(2, 2), BC=R(4, 4), BS=R(4, 4), BN=R(4, 4), TR=R(16, 2), TI=R(16, 2), CC=R(8, 4), CN=R(8, 4),
              vSg=R(), vWr=R(), vRd=R(), vIm=R(), vSo=R(), vLd=R(), tmp=R(12, 4), L=R(16, 4),
              ZR=[R(16, 4), R(16, 4)], ZI=[R(16, 4), R(16, 4)], IM=R(2, 2))
    RG['end'] = R.n
    return RG


def ifft_load(A, S_W, S_S2, RG, SRD, flag=''):
    vLd, L, tmp = RG['vLd'], RG['L'], RG['tmp']
    A(f'v_lshrrev_b32 v{vLd}, 4, v0')
    A(f'v_lshlrev_b32 v{vLd}, 12, v{vLd}')
    A(f'v_and_b32 v{tmp}, 15, v0')
    A(f'v_lshl_add_u32 v{vLd}, v{tmp}, 7, v{vLd}')
    A(f's_lshl_b32 s28, s{S_S2}, 14')
    A(f's_lshl_b32 s29, s{S_W}, 5')
    A(f's_add_u32 s28, s28, s29')
    A(f's_add_u32 s28, s28, {OFF_T2}')
    for p in range(2):
        for x in range(2):
            d = L + 8 * p + 4 * x
            A(f'buffer_load_dwordx4 v[{d}:{d + 3}], v{vLd}, s[{SRD}:{SRD + 3}], s28 offen offset:{x * 2048 + p * 16} {flag}')


def ifft_compute(A, S_W, S_S2, RG, SRD, sflag, nyounger=0):
    M8, BC, BS, BN, TR, TI, CC, CN, vSg, vWr, vRd, vIm, vSo, tmp, L, ZR, ZI, IM = (RG[k] for k in (
        'M8', 'BC', 'BS', 'BN', 'TR', 'TI', 'CC', 'CN', 'vSg', 'vWr', 'vRd', 'vIm', 'vSo', 'tmp', 'L', 'ZR', 'ZI', 'IM'))
    A(f'v_mov_b32 v{IM}, 0')
    A(f'v_mov_b32 v{IM + 1}, 0')
    for p in range(2):
        A(f's_waitcnt vmcnt({nyounger + 2 - 2 * p})')
        for t in range(4):
            a = ZI[p] + 2 * t
            s0 = L + 8 * p + (t & 2)
            A(f'v_pk_mov_b32 v[{a}:{a + 1}], v[{s0}:{s0 + 1}], v[{s0 + 4}:{s0 + 5}] op_sel:[{t & 1},{t & 1}]')
        for t in range(4):
            a = ZI[p] + 2 * t
            A(f'v_mfma_f32_16x16x16_bf16 v[{ZR[p] + 4 * t}:{ZR[p] + 4 * t + 3}], v[{a}:{a + 1}], v[{M8}:{M8 + 1}], 0')
    for p in range(2):
        for t in range(4):
            a = ZI[p] + 8 + 2 * t
            A(f'v_cvt_pk_bf16_f32 v{a}, v{ZR[p] + 4 * t}, v{ZR[p] + 4 * t + 1}')
            A(f'v_cvt_pk_bf16_f32 v{a + 1}, v{ZR[p] + 4 * t + 2}, v{ZR[p] + 4 * t + 3}')
            A(f'ds_write_b64 v{vWr}, v[{a}:{a + 1}] offset:{(4 * p + t) * 32}')
    A(f's_lshl_b32 s28, s{S_S2}, 3')
    A(f's_add_u32 s28, s28, s{S_W}')
    A(f's_lshl_b32 s28, s28, 11')
    A(f's_add_u32 s28, s28, {OFF_S}')
    A(f's_add_u32 s29, s28, {4 * 2048}')
    A('s_waitcnt lgkmcnt(0)')
    A('s_barrier')
    for z in range(2):
        for ro in range(2):
            d = L + 8 * z + 4 * ro
            A(f'ds_read_b128 v[{d}:{d + 3}], v{vRd} offset:{(8 * z + ro) * RROW}')
        A(f'ds_read_u16_d16_hi v{IM + z}, v{vIm} offset:{(8 * z + 1) * RROW}')
    for z in range(2):
        A(f's_waitcnt lgkmcnt({4 - 3 * z})')
        re, im = L + 8 * z, L + 8 * z + 4
        for (Z, c0, c1) in ((ZR[z], BC, BN), (ZI[z], BS, BC)):
            A(f'v_mfma_f32_32x32x16_bf16 v[{Z}:{Z + 15}], v[{re}:{re + 3}], v[{c0}:{c0 + 3}], 0')
        for (Z, c0, c1) in ((ZR[z], BC, BN), (ZI[z], BS, BC)):
            A(f'v_mfma_f32_32x32x16_bf16 v[{Z}:{Z + 15}], v[{im}:{im + 3}], v[{c1}:{c1 + 3}], v[{Z}:{Z + 15}]')
    A('s_waitcnt lgkmcnt(0)')
    for z in range(2):
        Yr, Yi = ZR[z], ZI[z]
        PR, PI = L, L + 8
        A(f'v_fmac_f32 v{Yr}, v{IM + z}, v{vSg}')
        for q in range(8):
            yr, yi, tr, ti = (f'v[{x + 2 * q}:{x + 2 * q + 1}]' for x in (Yr, Yi, TR, TI))
            a0 = tmp + 2 * (q & 1)
            t0 = f'v[{a0}:{a0 + 1}]'
            A(f'v_pk_mul_f32 {t0}, {yr}, {tr}')
            A(f'v_pk_mul_f32 {yr}, {yr}, {ti}')
            A(f'v_pk_fma_f32 {t0}, {yi}, {ti}, {t0} neg_lo:[1,0,0] neg_hi:[1,0,0]')
            A(f'v_pk_fma_f32 {yr}, {yi}, {tr}, {yr}')
            A(f'v_cvt_pk_bf16_f32 v{PR + q}, v{a0}, v{a0 + 1}')
            A(f'v_cvt_pk_bf16_f32 v{PI + q}, v{Yr + 2 * q}, v{Yr + 2 * q + 1}')
        seq = [(PR, CC, 0), (PI, CN, 0), (PR, CC, 1), (PI, CN, 1)]
        for n, (d, c, kk) in enumerate(seq):
            A(f'v_mfma_f32_32x32x16_bf16 v[{Yi}:{Yi + 15}], v[{d + 4 * kk}:{d + 4 * kk + 3}], v[{c + 4 * kk}:{c + 4 * kk + 3}], ' + ('0' if n == 0 else f'v[{Yi}:{Yi + 15}]'))
    for z in range(2):
        Yr, Yi = ZR[z], ZI[z]
        for q in range(8):
            A(f'v_cvt_pk_bf16_f32 v{Yr + q}, v{Yi + 2 * q}, v{Yi + 2 * q + 1}')
        for q in range(4):
            A(f'v_permlane16_swap_b32 v{Yr + q}, v{Yr + 4 + q}')
        for hh in range(2):
            A(f'buffer_store_dwordx4 v[{Yr + 4 * hh}:{Yr + 4 * hh + 3}], v{vSo}, s[{SRD}:{SRD + 3}], s{28 + z} offen offset:{hh * 1024} {sflag}')
```

```python
from asmlib import *
from model import OFF_XN, OFF_T, OFF_T2, OFF_S, OFF_H

KA_X, KA_WR, KA_WI, KA_BX, KA_W1, KA_B1, KA_W2, KA_B2, KA_OUT, KA_DBG, KA_WS = [8 * i for i in range(11)]
WS_BYTES = 1 << 28


def make_srd(A, d, base, nbytes, add=0):
    if add:
        A(f's_add_u32 s{d}, s{base}, {add:#x}')
        A(f's_addc_u32 s{d + 1}, s{base + 1}, 0')
        A(f's_and_b32 s{d + 1}, s{d + 1}, 0xffff')
    else:
        A(f's_mov_b32 s{d}, s{base}')
        A(f's_and_b32 s{d + 1}, s{base + 1}, 0xffff')
    A(f's_mov_b32 s{d + 2}, {nbytes:#x}')
    A(f's_mov_b32 s{d + 3}, 0x20000')


def gemm1_body(A, cfg):
    NST = 3
    STAGE = 49152
    NSTEPS = 16
    stflag = cfg.get('hstore', 'sc0 sc1 nt')
    S_W = 5
    S_WS, S_W1, S_B1, S_W2 = 6, 8, 10, 12
    SRD_A, SRD_B, SRD_C = 16, 20, 24
    L_LOAD = A.newlabel('g1_loader')
    ST = Stamps(cfg.get('stamp'), cfg.get('kidx1', 0))
    ST.take(A, 0)
    A(f's_load_dwordx2 s[{S_WS}:{S_WS + 1}], s[0:1], {KA_WS}')
    A(f's_load_dwordx4 s[{S_W1}:{S_W1 + 3}], s[0:1], {KA_W1}')
    A(f's_load_dwordx2 s[{S_W2}:{S_W2 + 1}], s[0:1], {KA_W2}')
    A('v_lshrrev_b32 v1, 6, v0')
    A('v_and_b32 v0, 63, v0')
    A(f'v_readfirstlane_b32 s{S_W}, v1')
    A(f's_mov_b32 s46, {-(NST - 1) * STAGE & 0xffffffff:#x}')
    A(f's_cmp_ge_u32 s{S_W}, 4')
    A(f's_cbranch_scc1 {L_LOAD}')

    ACC = 0
    vL = 128
    vX = 129
    vW = 130
    vT = 134
    A(f'v_mov_b32 v{vL}, v0')
    A(f'v_lshrrev_b32 v{vT}, 4, v{vL}')
    A(f'v_lshlrev_b32 v{vT + 1}, 3, v{vT}')
    A(f's_lshl_b32 s14, s4, 9')
    A(f's_lshl_b32 s15, s{S_W}, 7')
    A(f's_add_u32 s14, s14, s15')
    A('s_waitcnt lgkmcnt(0)')
    make_srd(A, SRD_B, S_B1, 3584 * 2)
    for nt in range(4):
        A(f'buffer_load_dwordx2 v[{vT + 2 + 2 * nt}:{vT + 3 + 2 * nt}], v{vT + 1}, s[{SRD_B}:{SRD_B + 3}], s14 offen offset:{nt * 32}')
    make_srd(A, SRD_C, S_WS, 2048 * 3584 * 2, OFF_H)
    A(f'v_lshlrev_b32 v{vX}, 4, v{vL}')
    t0 = vT + 10
    A(f'v_bfe_u32 v{t0}, v{vL}, 2, 2')
    A(f'v_lshl_add_u32 v{t0 + 1}, v{vT}, 3, v{t0}')
    A(f'v_lshlrev_b32 v{t0 + 1}, 9, v{t0 + 1}')
    A(f'v_and_b32 v{t0 + 2}, 3, v{vL}')
    A(f'v_lshl_add_u32 v{t0 + 1}, v{t0 + 2}, 3, v{t0 + 1}')
    A(f'v_add_u32 v{t0 + 1}, 16384, v{t0 + 1}')
    A(f'v_and_b32 v{t0 + 2}, 1, v{vT}')
    A(f'v_lshl_or_b32 v{t0}, v{t0 + 2}, 2, v{t0}')
    A(f's_lshl_b32 s15, s{S_W}, 2')
    for nt in range(4):
        A(f's_add_u32 s28, s15, {nt}')
        A(f'v_xor_b32 v{t0 + 2}, s28, v{t0}')
        A(f'v_lshl_add_u32 v{vW + nt}, v{t0 + 2}, 5, v{t0 + 1}')
    vH = vT + 13
    A(f's_mul_i32 s28, s3, {8 * 112 * 1024}')
    A(f's_lshl_b32 s29, s4, 13')
    A(f's_add_u32 s28, s28, s29')
    A(f's_lshl_b32 s29, s{S_W}, 11')
    A(f's_add_u32 s28, s28, s29')
    A(f'v_add_u32 v{vH}, s28, v{vX}')
    A('s_waitcnt vmcnt(0)')
    for nt in range(4):
        b = vT + 2 + 2 * nt
        base = (nt * 8) * 4
        A(f'v_lshlrev_b32 v{base}, 16, v{b}')
        A(f'v_and_b32 v{base + 1}, 0xffff0000, v{b}')
        A(f'v_lshlrev_b32 v{base + 2}, 16, v{b + 1}')
        A(f'v_and_b32 v{base + 3}, 0xffff0000, v{b + 1}')
        for mt in range(1, 8):
            for r in range(0, 4, 2):
                A(f'v_pk_mov_b32 v[{base + mt * 4 + r}:{base + mt * 4 + r + 1}], v[{base + r}:{base + r + 1}], v[{base + r}:{base + r + 1}] op_sel:[0,1]')

    def reads(st, kb):
        r = []
        for nt in range(4):
            for t in range(2):
                d = 160 + 16 * st + nt * 4 + 2 * t
                r.append(f'ds_read_b64_tr_b16 v[{d}:{d + 1}], v{vW + nt} offset:{kb * 16384 + t * 2048}')
        for mt in range(8):
            d = 32 * st + mt * 4
            r.append(f'ds_read_b128 a[{d}:{d + 3}], v{vX} offset:{(mt * 2 + kb) * 1024}')
        return r

    def mfmas(st):
        r = []
        for mt in range(8):
            for nt in (range(4) if mt % 2 == 0 else range(3, -1, -1)):
                c = (nt * 8 + mt) * 4
                w = 160 + 16 * st + nt * 4
                x = 32 * st + mt * 4
                r.append(f'v_mfma_f32_16x16x32_bf16 v[{c}:{c + 3}], v[{w}:{w + 3}], a[{x}:{x + 3}], v[{c}:{c + 3}]')
        return r

    def substep(st, rd, extra):
        m = mfmas(st)
        for i, ins in enumerate(m):
            if not cfg.get('nomfma'):
                A(ins)
            if i < len(rd):
                A(rd[i])
            elif i - len(rd) < len(extra):
                A(extra[i - len(rd)])

    A('s_mov_b32 s30, 0')
    A('s_mov_b32 s31, 0')
    A('s_barrier')
    ST.take(A, 1)
    for ins in reads(0, 0):
        A(ins)
    A('s_waitcnt lgkmcnt(0)')
    L = A.newlabel('g1_loop')
    A.label(L)
    upd = [f's_add_u32 s31, s31, 1', f's_cmp_eq_u32 s31, {NST}',
           f's_cselect_b32 s32, s46, {STAGE}', f's_cselect_b32 s31, 0, s31',
           f'v_add_u32 v{vX}, s32, v{vX}'] + [f'v_add_u32 v{vW + nt}, s32, v{vW + nt}' for nt in range(4)]
    substep(0, reads(1, 1), upd)
    A('s_waitcnt lgkmcnt(0)')
    A('s_barrier')
    substep(1, reads(0, 0), ['s_add_u32 s30, s30, 1', f's_cmp_lt_u32 s30, {NSTEPS}'])
    A('s_waitcnt lgkmcnt(0)')
    A(f's_cbranch_scc1 {L}')
    ST.take(A, 2)
    A('s_mov_b32 s28, 0')
    tp = [vT + 14, vT + 18]
    k = 0
    for mt in range(8):
        for p in range(2):
            o = tp[k & 1]
            k += 1
            for q in range(2):
                c = ((2 * p + q) * 8 + mt) * 4
                for r in range(4):
                    A(f'v_max_f32 v{c + r}, 0, v{c + r}')
                for r in range(0, 4, 2):
                    A(f'v_pk_mul_f32 v[{c + r}:{c + r + 1}], v[{c + r}:{c + r + 1}], v[{c + r}:{c + r + 1}]')
                for r in range(0, 4, 2):
                    A(f'v_cvt_pk_bf16_f32 v{o + 2 * q + r // 2}, v{c + r}, v{c + r + 1}')
            A(f'buffer_store_dwordx4 v[{o}:{o + 3}], v{vH}, s[{SRD_C}:{SRD_C + 3}], s28 offen offset:{p * 1024} {stflag}')
        if mt < 7:
            A(f's_add_u32 s28, s28, {112 * 1024}')
    ST.take(A, 3)
    ST.flush(A, [0, 1, 2, 3, 4], S_WS, S_W)
    A('s_endpgm')

    A.label(L_LOAD)
    A(f's_sub_u32 s{S_W}, s{S_W}, 4')
    vA0, vA1, vB = 2, 3, 4
    A('v_lshlrev_b32 v1, 4, v0')
    A(f's_lshl_b32 s14, s3, 3')
    A(f's_lshl_b32 s15, s{S_W}, 1')
    A(f's_add_u32 s14, s14, s15')
    A(f's_lshl_b32 s14, s14, 15')
    A(f'v_add_u32 v{vA0}, s14, v1')
    A(f'v_add_u32 v{vA1}, {32768 - 2048}, v{vA0}')
    A('v_lshrrev_b32 v12, 5, v0')
    A('v_and_b32 v13, 31, v0')
    A(f's_mul_i32 s14, s{S_W}, {16 * 7168}')
    A(f's_lshl_b32 s15, s4, 9')
    A(f's_add_u32 s14, s14, s15')
    A(f's_mov_b32 s15, 7168')
    A(f'v_mul_lo_u32 v14, v12, s15')
    A(f'v_add_u32 v14, s14, v14')
    for i in range(8):
        fc = (2 * (i & 1)) | (((i >> 2) & 1) << 2)
        A(f'v_or_b32 v15, {fc}, v12')
        A(f'v_lshlrev_b32 v15, 1, v15')
        A(f'v_xor_b32 v15, v15, v13')
        A(f'v_lshl_add_u32 v15, v15, 4, v14')
        A(f'v_add_u32 v{vB + i}, {2 * i * 7168 - (i & 3) * 1024}, v15')
    A('s_waitcnt lgkmcnt(0)')
    make_srd(A, SRD_A, S_WS, 4 << 20, OFF_XN)
    make_srd(A, SRD_B, S_W1, 1024 * 3584 * 2)
    A('s_mov_b32 s28, 0')
    A('s_mov_b32 s29, 0')
    A(f's_lshl_b32 s30, s{S_W}, 12')
    A(f's_lshl_b32 s31, s{S_W}, 13')
    A(f's_add_u32 s31, s31, 16384')
    A('s_mov_b32 s33, 0')

    def issue():
        A('s_mov_b32 m0, s30')
        for i in range(4):
            va = vA0 if i < 2 else vA1
            A(f'buffer_load_dwordx4 v{va}, s[{SRD_A}:{SRD_A + 3}], s28 offen offset:{i * 1024} lds')
        A('s_mov_b32 m0, s31')
        for i in range(8):
            if i == 4:
                A('s_add_u32 m0, s31, 4096')
            A(f'buffer_load_dwordx4 v{vB + i}, s[{SRD_B}:{SRD_B + 3}], s29 offen offset:{(i & 3) * 1024} lds')
        A('s_add_u32 s28, s28, 2048')
        A(f's_add_u32 s29, s29, {64 * 7168}')
        A('s_add_u32 s33, s33, 1')
        A(f's_cmp_eq_u32 s33, {NST}')
        A(f's_cselect_b32 s32, s46, {STAGE}')
        A('s_cselect_b32 s33, 0, s33')
        A('s_add_u32 s30, s30, s32')
        A('s_add_u32 s31, s31, s32')

    noload = cfg.get('noload')
    for _ in range(NST):
        issue()
    A('s_waitcnt vmcnt(24)')
    A('s_barrier')
    A('s_mov_b32 s34, 0')
    L2 = A.newlabel('g1_lloop')
    A.label(L2)
    A('s_waitcnt vmcnt(12)')
    A('s_barrier')
    if not noload:
        issue()
    A('s_add_u32 s34, s34, 1')
    A(f's_cmp_lt_u32 s34, {NSTEPS - NST}')
    A(f's_cbranch_scc1 {L2}')
    npf = cfg.get('pf_w2', 0)
    if npf:
        make_srd(A, SRD_A, S_W2, 1024 * 3584 * 2)
        A('s_mul_i32 s35, s3, 14')
        A('s_add_u32 s35, s35, s4')
        A('s_lshl_b32 s35, s35, 15')
        A(f's_lshl_b32 s36, s{S_W}, 13')
        A('s_add_u32 s35, s35, s36')
        for i in range(8):
            if i == 4:
                A('s_add_u32 s35, s35, 4096')
            A(f'buffer_load_dwordx4 v[{16 + 4 * i}:{19 + 4 * i}], v1, s[{SRD_A}:{SRD_A + 3}], s35 offen offset:{(i & 3) * 1024}')
        x = 8
    else:
        x = 0
    A(f's_waitcnt vmcnt({12 + x})')
    A('s_barrier')
    A(f's_waitcnt vmcnt({x})')
    A('s_barrier')
    A('s_barrier')
    A('s_endpgm')


def gemm1_map(A, L_EXIT, L_FFT=None):
    A('s_cmp_ge_u32 s2, 256')
    A(f's_cbranch_scc1 {L_EXIT}')
    A('s_and_b32 s3, s2, 7')
    A('s_lshr_b32 s5, s2, 3')
    A('s_sub_u32 s4, s5, 28')
    A('s_cmp_ge_u32 s5, 28')
    A(f's_cbranch_scc1 {L_FFT or L_EXIT}')
    A('s_mul_i32 s6, s5, 37')
    A('s_lshr_b32 s6, s6, 8')
    A('s_mul_i32 s7, s6, 7')
    A('s_sub_u32 s7, s5, s7')
    A('s_and_b32 s4, s3, 1')
    A('s_mul_i32 s4, s4, 7')
    A('s_add_u32 s4, s4, s7')
    A('s_lshr_b32 s3, s3, 1')
    A('s_lshl_b32 s3, s3, 2')
    A('s_add_u32 s3, s3, s6')


def gemm2_map(A, L_EXIT):
    A('s_cmp_ge_u32 s2, 256')
    A(f's_cbranch_scc1 {L_EXIT}')
    A('s_and_b32 s5, s2, 7')
    A('s_lshr_b32 s6, s2, 3')
    A('s_lshr_b32 s3, s5, 1')
    A('s_lshl_b32 s3, s3, 2')
    A('s_lshr_b32 s7, s6, 3')
    A('s_add_u32 s3, s3, s7')
    A('s_and_b32 s4, s5, 1')
    A('s_lshl_b32 s4, s4, 3')
    A('s_and_b32 s7, s6, 7')
    A('s_add_u32 s4, s4, s7')


def gemm2_body(A, cfg, ifft=None):
    NST = cfg.get('nst2', 5)
    STAGE = 24576
    NSTEPS = 56
    S_W = 5
    S_WS, S_W2, S_B2, S_OUT, S_DBG, S_X = 6, 8, 10, 12, 14, 36
    SRD_A, SRD_B, SRD_C, SRD_D = 16, 20, 24, 40
    L_LOAD = A.newlabel('g2_loader')
    ST = Stamps(cfg.get('stamp'), cfg.get('kidx2', 1))
    ST.take(A, 0)
    A(f's_load_dwordx2 s[{S_WS}:{S_WS + 1}], s[0:1], {KA_WS}')
    A(f's_load_dwordx4 s[{S_W2}:{S_W2 + 3}], s[0:1], {KA_W2}')
    A(f's_load_dwordx4 s[{S_OUT}:{S_OUT + 3}], s[0:1], {KA_OUT}')
    A(f's_load_dwordx2 s[{S_X}:{S_X + 1}], s[0:1], {KA_X}')
    A('v_lshrrev_b32 v1, 6, v0')
    A('v_and_b32 v0, 63, v0')
    A(f'v_readfirstlane_b32 s{S_W}, v1')
    A(f's_mov_b32 s46, {-(NST - 1) * STAGE & 0xffffffff:#x}')
    A(f's_cmp_ge_u32 s{S_W}, 4')
    A(f's_cbranch_scc1 {L_LOAD}')

    nbar = 1 if ifft else 0
    vL, vX = 32, 33
    vW = 34
    vO = 36
    vS = 37
    vXD = 40
    vSD = 56
    vT = 72
    A(f'v_mov_b32 v{vL}, v0')
    A(f's_lshr_b32 s28, s{S_W}, 1')
    A(f's_and_b32 s29, s{S_W}, 1')
    A(f'v_lshrrev_b32 v{vT}, 4, v{vL}')
    A(f'v_lshlrev_b32 v{vT + 1}, 3, v{vT}')
    A(f's_lshl_b32 s30, s4, 7')
    A(f's_lshl_b32 s31, s29, 6')
    A(f's_add_u32 s30, s30, s31')
    A('s_waitcnt lgkmcnt(0)')
    if ifft:
        A(f's_mov_b32 s47, s28')
        A(f's_mov_b32 s48, s29')
        ifft[0](A)
        A(f's_mov_b32 s28, s47')
        A(f's_mov_b32 s29, s48')
    make_srd(A, SRD_B, S_B2, 1024 * 2)
    for nt in range(2):
        A(f'buffer_load_dwordx2 v[{vT + 2 + 2 * nt}:{vT + 3 + 2 * nt}], v{vT + 1}, s[{SRD_B}:{SRD_B + 3}], s30 offen offset:{nt * 32}')
    make_srd(A, SRD_A, S_X, 4 << 20)
    make_srd(A, SRD_C, S_OUT, 4 << 20)
    make_srd(A, SRD_D, S_WS, 4 << 20, OFF_S)
    t0 = vT + 8
    A(f'v_and_b32 v{t0}, 1, v{vT}')
    A(f'v_lshlrev_b32 v{t0}, 5, v{t0}')
    A(f'v_lshrrev_b32 v{t0 + 1}, 1, v{vT}')
    A(f'v_lshl_add_u32 v{t0}, v{t0 + 1}, 4, v{t0}')
    A(f'v_add_u32 v{t0}, s30, v{t0}')
    A(f'v_and_b32 v{t0 + 1}, 7, v{vL}')
    A(f'v_lshlrev_b32 v{t0 + 1}, 8, v{t0 + 1}')
    A(f'v_bfe_u32 v{t0 + 2}, v{vL}, 3, 1')
    A(f'v_add_u32 v{t0 + 1}, v{t0 + 1}, v{t0 + 2}')
    A(f's_lshl_b32 s31, s3, 4')
    A(f's_lshl_b32 s32, s28, 3')
    A(f's_add_u32 s31, s31, s32')
    A(f'v_add_u32 v{t0 + 1}, s31, v{t0 + 1}')
    A(f'v_lshl_add_u32 v{vO}, v{t0 + 1}, 11, v{t0}')
    A(f'v_and_b32 v{t0 + 1}, 15, v{vL}')
    A(f's_lshl_b32 s31, s31, 3')
    A(f'v_add_u32 v{t0 + 1}, s31, v{t0 + 1}')
    A(f'v_lshl_add_u32 v{vS}, v{t0 + 1}, 11, v{t0}')
    for mt in range(4):
        A(f's_mov_b32 s31, {mt * 4096}')
        A(f'buffer_load_dwordx4 v[{vXD + 4 * mt}:{vXD + 4 * mt + 3}], v{vO}, s[{SRD_A}:{SRD_A + 3}], s31 offen')

    def load_s(flag=''):
        for mt in range(4):
            A(f's_mov_b32 s33, {mt * 32768}')
            A(f'buffer_load_dwordx4 v[{vSD + 4 * mt}:{vSD + 4 * mt + 3}], v{vS}, s[{SRD_D}:{SRD_D + 3}], s33 offen {flag}')
    if not ifft:
        load_s()
    A(f'v_lshlrev_b32 v{vX}, 4, v{vL}')
    A(f's_lshl_b32 s31, s28, 13')
    A(f'v_add_u32 v{vX}, s31, v{vX}')
    A(f'v_bfe_u32 v{t0}, v{vL}, 2, 2')
    A(f'v_lshl_add_u32 v{t0}, v{vT}, 2, v{t0}')
    A(f'v_bfe_u32 v{t0 + 1}, v{t0}, 1, 2')
    A(f'v_lshlrev_b32 v{t0}, 7, v{t0}')
    A(f'v_and_b32 v{t0 + 2}, 3, v{vL}')
    A(f'v_lshl_add_u32 v{t0}, v{t0 + 2}, 3, v{t0}')
    A(f'v_add_u32 v{t0}, 16384, v{t0}')
    A(f's_lshl_b32 s31, s29, 1')
    for nt in range(2):
        A(f's_add_u32 s32, s31, {nt}')
        A(f'v_xor_b32 v{t0 + 2}, s32, v{t0 + 1}')
        A(f'v_lshl_add_u32 v{vW + nt}, v{t0 + 2}, 5, v{t0}')
    if ifft:
        ifft[1](A)
    ST.take(A, 5)
    A(f's_waitcnt vmcnt(8)')
    for nt in range(2):
        b = vT + 2 + 2 * nt
        base = (nt * 4) * 4
        A(f'v_lshlrev_b32 v{base}, 16, v{b}')
        A(f'v_and_b32 v{base + 1}, 0xffff0000, v{b}')
        A(f'v_lshlrev_b32 v{base + 2}, 16, v{b + 1}')
        A(f'v_and_b32 v{base + 3}, 0xffff0000, v{b + 1}')
        for mt in range(1, 4):
            for r in range(0, 4, 2):
                A(f'v_pk_mov_b32 v[{base + mt * 4 + r}:{base + mt * 4 + r + 1}], v[{base + r}:{base + r + 1}], v[{base + r}:{base + r + 1}] op_sel:[0,1]')
    FR = 80

    def reads(st, kb):
        r = []
        for nt in range(2):
            for t in range(2):
                d = FR + 24 * st + nt * 4 + 2 * t
                r.append(f'ds_read_b64_tr_b16 v[{d}:{d + 1}], v{vW + nt} offset:{kb * 4096 + t * 2048}')
        for mt in range(4):
            d = FR + 24 * st + 8 + mt * 4
            r.append(f'ds_read_b128 v[{d}:{d + 3}], v{vX} offset:{(mt * 2 + kb) * 1024}')
        return r

    def substep(st, rd, extra):
        rd = list(rd)
        extra = list(extra)
        first = True
        for mt in range(4):
            for nt in range(2):
                c = (nt * 4 + mt) * 4
                w = FR + 24 * st + nt * 4
                x = FR + 24 * st + 8 + mt * 4
                if not cfg.get('nomfma'):
                    A(f'v_mfma_f32_16x16x32_bf16 v[{c}:{c + 3}], v[{w}:{w + 3}], v[{x}:{x + 3}], v[{c}:{c + 3}]')
                for _ in range(2):
                    if rd:
                        A(rd.pop(0))
                    elif extra:
                        A(extra.pop(0))
        for e in extra:
            A(e)

    A('s_mov_b32 s30, 0')
    A('s_mov_b32 s31, 0')
    A('s_barrier')
    ST.take(A, 1)
    for ins in reads(0, 0):
        A(ins)
    A('s_waitcnt lgkmcnt(0)')
    L = A.newlabel('g2_loop')
    A.label(L)
    upd = [f's_add_u32 s31, s31, 1', f's_cmp_eq_u32 s31, {NST}',
           f's_cselect_b32 s32, s46, {STAGE}', f's_cselect_b32 s31, 0, s31',
           f'v_add_u32 v{vX}, s32, v{vX}'] + [f'v_add_u32 v{vW + nt}, s32, v{vW + nt}' for nt in range(2)]
    substep(0, reads(1, 1), upd)
    A('s_waitcnt lgkmcnt(0)')
    A('s_barrier')
    substep(1, reads(0, 0), ['s_add_u32 s30, s30, 1'])
    if ifft:
        LA = A.newlabel('g2_pub')
        A(f's_cmp_lg_u32 s30, 2')
        A(f's_cbranch_scc1 {LA}')
        A(f's_lshl_b32 s33, s3, 4')
        A(f'v_mov_b32 v{vT}, s33')
        A(f'v_mov_b32 v{vT + 1}, 1')
        A('s_waitcnt vmcnt(0)')
        A('s_mov_b64 exec, 1')
        A(f'global_atomic_add v{vT}, v{vT + 1}, s[{S_DBG}:{S_DBG + 1}] sc1')
        A('s_mov_b64 exec, -1')
        A.label(LA)
        LS = A.newlabel('g2_skip')
        A(f's_cmp_lg_u32 s30, {NSTEPS - cfg.get("spoll", 8)}')
        A(f's_cbranch_scc1 {LS}')
        LP = A.newlabel('g2_poll')
        A(f's_lshl_b32 s33, s3, 4')
        A(f'v_mov_b32 v{vT}, s33')
        A(f's_mov_b32 s34, 0')
        A.label(LP)
        A(f'global_load_dword v{vT + 1}, v{vT}, s[{S_DBG}:{S_DBG + 1}] sc1')
        A('s_waitcnt vmcnt(0)')
        A(f'v_readfirstlane_b32 s33, v{vT + 1}')
        A('s_add_u32 s34, s34, 1')
        A(f's_cmp_ge_u32 s34, {1 << 20}')
        A(f's_cselect_b32 s33, 64, s33')
        A(f's_cmp_lt_u32 s33, 64')
        A(f's_cbranch_scc1 {LP}')
        load_s('sc1')
        A.label(LS)
    A(f's_cmp_lt_u32 s30, {NSTEPS}')
    A('s_waitcnt lgkmcnt(0)')
    A(f's_cbranch_scc1 {L}')
    ST.take(A, 2)
    A('s_waitcnt vmcnt(0)')
    A(f's_mov_b32 s44, 0xbfb8aa3b')
    A(f's_mov_b32 s45, 0xbfb8aa3b')
    A(f's_mov_b32 s35, 0xffff0000')
    E = FR
    for mt in range(4):
        c0 = mt * 4
        c1 = 16 + mt * 4
        for r in range(4):
            A(f'v_permlane16_swap_b32 v{c0 + r}, v{c1 + r}')
        vals = [c0, c0 + 2, c1, c1 + 2]
        e = E + (mt & 1) * 24
        for q in range(4):
            A(f'v_pk_mul_f32 v[{e + 2 * q}:{e + 2 * q + 1}], v[{vals[q]}:{vals[q] + 1}], s[44:45]')
        for q in range(8):
            A(f'v_exp_f32 v{e + q}, v{e + q}')
        for q in range(4):
            A(f'v_lshlrev_b32 v{e + 8 + 2 * q}, 16, v{vSD + 4 * mt + q}')
            A(f'v_and_b32 v{e + 9 + 2 * q}, s35, v{vSD + 4 * mt + q}')
        for q in range(4):
            A(f'v_pk_add_f32 v[{e + 2 * q}:{e + 2 * q + 1}], v[{e + 2 * q}:{e + 2 * q + 1}], 1.0 op_sel_hi:[1,0]')
        for q in range(8):
            A(f'v_rcp_f32 v{e + q}, v{e + q}')
        for q in range(4):
            A(f'v_pk_mul_f32 v[{e + 8 + 2 * q}:{e + 9 + 2 * q}], v[{e + 8 + 2 * q}:{e + 9 + 2 * q}], v[{vals[q]}:{vals[q] + 1}]')
        for q in range(4):
            A(f'v_lshlrev_b32 v{e + 16 + 2 * q}, 16, v{vXD + 4 * mt + q}')
            A(f'v_and_b32 v{e + 17 + 2 * q}, s35, v{vXD + 4 * mt + q}')
        for q in range(4):
            A(f'v_pk_fma_f32 v[{e + 2 * q}:{e + 2 * q + 1}], v[{e + 2 * q}:{e + 2 * q + 1}], v[{e + 8 + 2 * q}:{e + 9 + 2 * q}], v[{e + 16 + 2 * q}:{e + 17 + 2 * q}]')
        for q in range(4):
            A(f'v_cvt_pk_bf16_f32 v{vXD + 4 * mt + q}, v{e + 2 * q}, v{e + 2 * q + 1}')
        A(f's_mov_b32 s31, {mt * 4096}')
        A(f'buffer_store_dwordx4 v[{vXD + 4 * mt}:{vXD + 4 * mt + 3}], v{vO}, s[{SRD_C}:{SRD_C + 3}], s31 offen {cfg.get("ostore", "")}')
    ST.take(A, 3)
    ST.flush(A, [0, 1, 2, 3, 5, 4], S_WS, S_W)
    A('s_endpgm')

    A.label(L_LOAD)
    A(f's_sub_u32 s{S_W}, s{S_W}, 4')
    vA0, vA1, vB = 2, 3, 4
    A('v_lshlrev_b32 v1, 4, v0')
    A(f's_lshl_b32 s38, s3, 3')
    A(f's_lshl_b32 s39, s{S_W}, 1')
    A(f's_add_u32 s38, s38, s39')
    A(f's_mul_i32 s38, s38, {112 * 1024}')
    A(f'v_add_u32 v{vA0}, s38, v1')
    A(f'v_add_u32 v{vA1}, {112 * 1024 - 2048}, v{vA0}')
    A('v_lshrrev_b32 v12, 3, v0')
    A('v_and_b32 v13, 7, v0')
    A('v_and_b32 v14, 6, v12')
    A('v_xor_b32 v13, v13, v14')
    A('v_lshlrev_b32 v12, 11, v12')
    A('v_lshl_add_u32 v12, v13, 4, v12')
    A(f's_lshl_b32 s38, s{S_W}, 15')
    A(f's_lshl_b32 s39, s4, 7')
    A(f's_add_u32 s38, s38, s39')
    A(f'v_add_u32 v{vB}, s38, v12')
    A(f'v_add_u32 v{vB + 1}, {8 * 2048 - 1024}, v{vB}')
    A('s_waitcnt lgkmcnt(0)')
    make_srd(A, SRD_A, S_WS, 2048 * 3584 * 2, OFF_H)
    make_srd(A, SRD_B, S_W2, 1024 * 3584 * 2)
    A('s_mov_b32 s28, 0')
    A('s_mov_b32 s29, 0')
    A(f's_lshl_b32 s30, s{S_W}, 12')
    A(f's_lshl_b32 s31, s{S_W}, 11')
    A(f's_add_u32 s31, s31, 16384')
    A('s_mov_b32 s33, 0')

    def issue():
        A('s_mov_b32 m0, s30')
        for i in range(4):
            va = vA0 if i < 2 else vA1
            A(f'buffer_load_dwordx4 v{va}, s[{SRD_A}:{SRD_A + 3}], s28 offen offset:{i * 1024} lds')
        A('s_mov_b32 m0, s31')
        for i in range(2):
            A(f'buffer_load_dwordx4 v{vB + i}, s[{SRD_B}:{SRD_B + 3}], s29 offen offset:{i * 1024} lds')
        A('s_add_u32 s28, s28, 2048')
        A(f's_add_u32 s29, s29, {64 * 2048}')
        A('s_add_u32 s33, s33, 1')
        A(f's_cmp_eq_u32 s33, {NST}')
        A(f's_cselect_b32 s32, s46, {STAGE}')
        A('s_cselect_b32 s33, 0, s33')
        A('s_add_u32 s30, s30, s32')
        A('s_add_u32 s31, s31, s32')

    for _ in range(NST):
        issue()
    for _ in range(nbar):
        A('s_barrier')
    A(f's_waitcnt vmcnt({6 * (NST - 1)})')
    A('s_barrier')
    A('s_mov_b32 s34, 0')
    L2 = A.newlabel('g2_lloop')
    A.label(L2)
    A(f's_waitcnt vmcnt({6 * (NST - 2)})')
    A('s_barrier')
    if not cfg.get('noload'):
        issue()
    A('s_add_u32 s34, s34, 1')
    A(f's_cmp_lt_u32 s34, {NSTEPS - NST}')
    A(f's_cbranch_scc1 {L2}')
    for i in range(NST):
        n = max(0, 6 * (NST - 2 - i))
        if i < NST - 1:
            A(f's_waitcnt vmcnt({n})')
        A('s_barrier')
    A('s_endpgm')
```

```python
import numpy as np

S, D, F = 2048, 1024, 3584
MB = 1 << 20
OFF_XN, OFF_T, OFF_T2, OFF_S, OFF_H = 0, 4 * MB, 8 * MB, 12 * MB, 16 * MB
OFF_SY, OFF_ST, OFF_CS, OFF_EX = 32 * MB, 33 * MB, 34 * MB, 40 * MB
OFF_WP, OFF_WC = 0, 33 * MB + 65536


def bf16_round(x):
    x = np.ascontiguousarray(x, dtype=np.float32)
    u = x.view(np.uint32)
    r = ((u + 0x7FFF + ((u >> 16) & 1)) >> 16).astype(np.uint16)
    return r


def bf16_to_f32(u16):
    return (u16.astype(np.uint32) << 16).view(np.float32)


def rb(x):
    return bf16_to_f32(bf16_round(x))


def layernorm_bf16(x):
    mu = x.astype(np.float64).mean(-1, keepdims=True)
    var = ((x.astype(np.float64) - mu) ** 2).mean(-1, keepdims=True)
    m = rb(mu.astype(np.float32))
    vb = rb(var.astype(np.float32))
    t = rb(vb + np.float32(1e-5))
    r = rb(np.sqrt(t))
    d = rb(x - m)
    return rb(d / r)


def m_of_s():
    s = np.arange(S)
    return 8 * (s % 256) + s // 256


def s_of_m():
    m = np.arange(S)
    return (m & 7) * 256 + (m >> 3)


def frag_major(A, perm_k=False):
    M, K = A.shape
    B = A.reshape(M // 16, 16, K // 32, 32)
    g = np.arange(4)[:, None]
    j = np.arange(8)[None, :]
    kidx = (8 * g + j) if not perm_k else (4 * g + (j & 3) + 16 * (j >> 2))
    C = B[:, :, :, kidx]
    return np.ascontiguousarray(C.transpose(0, 2, 3, 1, 4))


def unfrag_major(Cf, M, K, perm_k=False):
    C = Cf.reshape(M // 16, K // 32, 4, 16, 8).transpose(0, 3, 1, 2, 4)
    g = np.arange(4)[:, None]
    j = np.arange(8)[None, :]
    kidx = (8 * g + j) if not perm_k else (4 * g + (j & 3) + 16 * (j >> 2))
    out = np.empty((M // 16, 16, K // 32, 32), dtype=Cf.dtype)
    out[:, :, :, kidx.reshape(-1)] = C.reshape(M // 16, 16, K // 32, 32)
    return out.reshape(M, K)


def T_complex(xn):
    X1 = np.fft.rfft(xn.astype(np.float64), axis=1)
    P = X1[:, :512].copy()
    P[:, 0] = X1[:, 0].real + 1j * X1[:, 512].real
    P = P.reshape(8, 256, 512)
    T = np.fft.fft(P, axis=0)
    tw = np.exp(-2j * np.pi * np.arange(8)[:, None] * np.arange(256)[None, :] / 2048)
    return T * tw[:, :, None]


def T_layout(T):
    s2 = np.arange(256)
    rr = (s2 & 15) * 16 + (s2 >> 4)
    out = np.empty((8, 8, 256, 4, 2, 16), dtype=np.float64)
    Tr = T.reshape(8, 256, 8, 16, 4)
    for ro, part in enumerate((Tr.real, Tr.imag)):
        out[:, :, rr, :, ro, :] = part.transpose(1, 0, 2, 4, 3)
    return out


def T_unlayout(L):
    L = L.reshape(8, 8, 256, 4, 2, 16)
    s2 = np.arange(256)
    rr = (s2 & 15) * 16 + (s2 >> 4)
    c = L[:, :, rr, :, 0, :] + 1j * L[:, :, rr, :, 1, :]
    return c.transpose(1, 0, 2, 4, 3).reshape(8, 256, 512)


def T2_complex(T, wr, wi):
    W = wr.astype(np.float64) + 1j * wi.astype(np.float64)
    X = np.fft.fft(T, axis=1)
    Xk = X.transpose(1, 0, 2).reshape(2048, 512)
    Y = Xk * W[:, :512]
    k1 = np.arange(2048)
    neg = (-k1) % 2048
    W0h = (W[:, 0] + np.conj(W[neg, 0])) / 2
    W5h = (W[:, 512] + np.conj(W[neg, 512])) / 2
    U = (W0h + W5h) / 4
    V = (W0h - W5h) / 4
    Y[:, 0] = Xk[:, 0] * U + np.conj(Xk[neg, 0]) * V
    Yk = Y.reshape(256, 8, 512).transpose(1, 0, 2)
    return np.fft.ifft(Yk, axis=1) * 256


def T2_layout(T2):
    Tr = T2.transpose(1, 0, 2)
    return np.stack([Tr.real, Tr.imag], axis=-1)


def T2_unlayout(L):
    L = L.reshape(256, 8, 512, 2)
    c = L[..., 0] + 1j * L[..., 1]
    return c.transpose(1, 0, 2)


def S_from_T2(T2):
    tw = np.exp(+2j * np.pi * np.arange(8)[:, None] * np.arange(256)[None, :] / 2048)
    R = np.fft.ifft(T2 * tw[:, :, None], axis=0) * 8
    R = R.reshape(2048, 512)
    full = np.zeros((2048, 1024), dtype=np.complex128)
    full[:, :512] = R
    y = np.real(np.fft.ifft(full, axis=1) * 1024)
    y += np.imag(R[:, 0:1]) * ((-1.0) ** np.arange(1024))[None, :]
    return y * (2.0 / (2048 * 1024))


if __name__ == '__main__':
    rng = np.random.default_rng(0)
    x = rb(rng.standard_normal((S, D)).astype(np.float32) * 0.05)
    wr = rb(rng.standard_normal((S, 513)).astype(np.float32) * 0.001)
    wi = rb(rng.standard_normal((S, 513)).astype(np.float32) * 0.001)
    xn = layernorm_bf16(x)
    ref = np.fft.irfft2(np.fft.rfft2(xn.astype(np.float64)) * (wr + 1j * wi), s=(S, D))
    T = T_complex(xn)
    assert np.allclose(T_unlayout(T_layout(T)), T)
    T2 = T2_complex(T, wr, wi)
    assert np.allclose(T2_unlayout(T2_layout(T2)), T2)
    y = S_from_T2(T2)
    print('max err', np.abs(y - ref).max(), 'rms ref', ref.std())
    A = rng.standard_normal((64, 128))
    assert np.allclose(unfrag_major(frag_major(A), 64, 128), A)
    assert np.allclose(unfrag_major(frag_major(A, True), 64, 128, True), A)
```

```python
import sys, json
from asmlib import *
import gemm, fft
from g2s import k_g2s
from fused import k_fused

HEADER = open('recurrent_scan__spectral_gfnet__dense_activation_squared_relu__prompt.s.ref').read().split('; Override launch')[0]

def build(kernels, path):
    out = HEADER
    for (name, A, ao, grid, block, lds) in kernels:
        out += f'; @launch kernel={name} grid=({grid},1,1) block=({block},1,1) lds={lds}\n'
    out += '.amdgcn_target "amdgcn-amd-amdhsa--gfx950"\n.text\n'
    descs = ''
    seen = set()
    for (name, A, ao, grid, block, lds) in kernels:
        if name in seen:
            continue
        seen.add(name)
        t, d = kernel_text(name, A, ao, verbose=True)
        out += t
        descs += '.p2align 6\n' + d
    out += '.section .rodata,"a"\n' + descs
    open(path, 'w').write(out)

def k_gemm1(cfg):
    A = Asm()
    gemm.gemm1_map(A, 'g1_exit', None if cfg.get('nomid') else 'g1_mid')
    if cfg.get('nog1'):
        A('s_endpgm')
    else:
        gemm.gemm1_body(A, cfg)
    if not cfg.get('nomid'):
        A.label('g1_mid')
        Stamps(cfg.get('stamp'), 0).take(A, 0)
        fft.mid_body(A, cfg)
    A.label('g1_exit')
    A('s_endpgm')
    return ('gemm1_kernel', A, 192, 256, 512, 147456)

def k_gemm2(cfg):
    A = Asm()
    gemm.gemm2_map(A, 'g2_exit')
    LB = 24576 * cfg.get('nst2', 5)
    ifft = None
    if not cfg.get('noifft'):
        RG = fft.ifft_regs(80)

        def pre(A):
            A('s_lshl_b32 s49, s3, 4')
            A('s_add_u32 s49, s49, s4')
            gemm.make_srd(A, 52, 6, 16 << 20)
            fft.ifft_load(A, 5, 49, RG, 52)

        def main(A):
            fft.ifft_consts(A, 5, 49, RG, LB)
            fft.ifft_compute(A, 5, 49, RG, 52, cfg.get('sstore', 'sc1'), nyounger=6)
        ifft = (pre, main)
    gemm.gemm2_body(A, cfg, ifft)
    A.label('g2_exit')
    A('s_endpgm')
    return ('gemm2_kernel', A, None, 256, 512, LB + fft.IFFT_LDS)

def k_k1(cfg):
    A = Asm()
    A('s_cmp_ge_u32 s2, 256')
    A('s_cbranch_scc1 k1_exit')
    fft.k1_body(A, cfg)
    A.label('k1_exit')
    A('s_endpgm')
    return ('k1_kernel', A, None, 256, 512, fft.K1_LDS)

if __name__ == '__main__':
    which = sys.argv[1]
    path = sys.argv[2]
    cfg = json.loads(sys.argv[3]) if len(sys.argv) > 3 else {}
    ks = [globals()['k_' + w](cfg) for w in which.split(',')]
    build(ks, path)
```

```python
import re

TRANS = ('v_exp_f32', 'v_log_f32', 'v_rcp_f32', 'v_rsq_f32', 'v_sqrt_f32', 'v_sin_f32', 'v_cos_f32',
         'v_rcp_iflag_f32')

REG_RE = re.compile(r'^(-|\|)*([vas])(\d+|\[(\d+):(\d+)\])\|?$')


def parse_reg(tok):
    tok = tok.strip()
    if tok.startswith('abs(') and tok.endswith(')'):
        tok = tok[4:-1]
    if tok.startswith('-abs(') and tok.endswith(')'):
        tok = tok[5:-1]
    if tok in ('vcc',):
        return {('s', 'vcc_lo'), ('s', 'vcc_hi')}
    if tok in ('vcc_lo', 'vcc_hi'):
        return {('s', tok)}
    if tok == 'exec':
        return {('s', 'exec_lo'), ('s', 'exec_hi')}
    if tok in ('exec_lo', 'exec_hi'):
        return {('s', tok)}
    if tok == 'm0':
        return {('s', 'm0')}
    m = REG_RE.match(tok)
    if not m:
        return set()
    k = m.group(2)
    if m.group(4) is not None:
        return {(k, i) for i in range(int(m.group(4)), int(m.group(5)) + 1)}
    return {(k, int(m.group(3)))}


def split_ops(s):
    out, depth, cur = [], 0, ''
    for ch in s:
        if ch in '[(':
            depth += 1
        elif ch in '])':
            depth -= 1
        if ch == ',' and depth == 0:
            out.append(cur.strip())
            cur = ''
        else:
            cur += ch
    if cur.strip():
        out.append(cur.strip())
    return out


class Ins:
    __slots__ = ('text', 'mn', 'dst', 'src', 'cls', 'passes', 'srcc', 'ab', 'states', 'dpp', 'wide_store',
                 'sdata', 'lds_dma', 'label', 'target', 'lanesel')

    def __init__(self, text):
        self.text = text
        self.label = None
        self.target = None
        self.dst = set()
        self.src = set()
        self.srcc = set()
        self.ab = set()
        self.sdata = set()
        self.lanesel = set()
        self.passes = 0
        self.states = 1
        self.dpp = False
        self.wide_store = False
        self.lds_dma = False
        t = text.split(';')[0].strip()
        if t.endswith(':'):
            self.label = t[:-1]
            self.cls = 'label'
            self.mn = ''
            self.states = 0
            return
        if t == '' or t.startswith('.'):
            self.cls = 'dir'
            self.mn = ''
            self.states = 0
            return
        parts = t.split(None, 1)
        mn = parts[0]
        for suf in ('_e32', '_e64', '_dpp', '_sdwa'):
            if mn.endswith(suf):
                if suf == '_dpp':
                    self.dpp = True
                mn = mn[:-len(suf)]
        self.mn = mn
        rest = parts[1] if len(parts) > 1 else ''
        ops = split_ops(rest)
        mods = ''
        if ops:
            lp = ops[-1].split(None, 1)
            ops[-1] = lp[0]
            mods = lp[1] if len(lp) > 1 else ''
        if re.search(r'(row_shr|row_shl|row_ror|row_bcast|quad_perm|row_mirror|row_half_mirror|wave_|row_newbcast)', mods):
            self.dpp = True
        regs = [parse_reg(o) for o in ops]

        def U(idx):
            s = set()
            for i in idx:
                if i < len(regs):
                    s |= regs[i]
            return s
        n = len(ops)
        if mn.startswith('v_mfma'):
            self.cls = 'mfma'
            self.dst = U([0])
            self.ab = U([1, 2])
            self.srcc = U([3])
            self.src = self.ab | self.srcc
            if '32x32x16' in mn or '32x32x8' in mn:
                self.passes = 8
            elif '16x16x32' in mn or '16x16x16' in mn:
                self.passes = 4
            else:
                raise ValueError('unknown mfma ' + mn)
        elif mn.startswith('v_cmp'):
            self.cls = 'valu'
            self.dst = U([0])
            self.src = U(range(1, n))
            if mn.startswith('v_cmpx'):
                self.dst |= parse_reg('exec')
        elif mn in ('v_readfirstlane_b32', 'v_readlane_b32'):
            self.cls = 'valu'
            self.dst = U([0])
            self.src = U(range(1, n))
            if mn == 'v_readlane_b32':
                self.lanesel = U([2])
        elif mn == 'v_writelane_b32':
            self.cls = 'valu'
            self.dst = U([0])
            self.src = U(range(0, n))
            self.lanesel = U([2])
        elif mn.startswith('v_permlane') and 'swap' in mn:
            self.cls = 'valu'
            self.dst = U([0, 1])
            self.src = U([0, 1])
        elif mn in ('v_add_co_u32', 'v_sub_co_u32', 'v_addc_co_u32', 'v_subb_co_u32', 'v_subrev_co_u32',
                    'v_div_scale_f32', 'v_mad_u64_u32'):
            self.cls = 'valu'
            self.dst = U([0, 1])
            self.src = U(range(2, n))
        elif mn == 'v_nop':
            self.cls = 'valu'
        elif mn.startswith('v_'):
            self.cls = 'valu'
            self.dst = U([0])
            self.src = U(range(1, n))
            if mn in ('v_fmac_f32', 'v_dot2c_f32_bf16', 'v_pk_fmac_f16', 'v_fmac_f64') or self.dpp or 'sdwa' in text:
                self.src |= self.dst
            if mn == 'v_cndmask_b32' and n == 3:
                self.src |= parse_reg('vcc')
            if mn == 'v_div_fmas_f32':
                self.src |= parse_reg('vcc')
        elif mn.startswith('buffer_load') or mn.startswith('global_load') or mn.startswith('buffer_atomic') \
                or mn.startswith('global_atomic'):
            self.cls = 'vmem'
            islds = bool(re.search(r'\blds\b', mods)) or 'load_lds' in mn
            if islds:
                self.lds_dma = True
                self.src = U(range(0, n)) | {('s', 'm0')}
            elif 'atomic' in mn:
                self.src = U(range(0, n))
                if re.search(r'\bsc0\b', mods):
                    self.dst = U([0])
            else:
                self.dst = U([0])
                self.src = U(range(1, n))
                if 'd16' in mn:
                    self.src |= self.dst
        elif mn.startswith('buffer_store') or mn.startswith('global_store'):
            self.cls = 'vmem'
            self.src = U(range(0, n))
            self.sdata = U([0]) if mn.startswith('buffer') else U([1])
            if mn.endswith('x4') or mn.endswith('x3'):
                self.wide_store = True
        elif mn in ('buffer_inv', 'buffer_wbl2'):
            self.cls = 'vmem'
        elif mn.startswith('ds_read') or '_rtn' in mn or mn.startswith('ds_bpermute') or mn.startswith('ds_swizzle') \
                or mn.startswith('ds_permute'):
            self.cls = 'ds'
            self.dst = U([0])
            self.src = U(range(1, n))
            if 'd16' in mn:
                self.src |= self.dst
        elif mn.startswith('ds_'):
            self.cls = 'ds'
            self.src = U(range(0, n))
        elif mn == 's_nop':
            self.cls = 'salu'
            self.states = int(ops[0], 0) + 1
        elif mn.startswith('s_cbranch') or mn == 's_branch':
            self.cls = 'branch'
            self.target = ops[0]
        elif mn.startswith('s_cmp') or mn in ('s_waitcnt', 's_barrier', 's_endpgm', 's_setprio', 's_sleep',
                                              's_bitcmp1_b32', 's_bitcmp0_b32'):
            self.cls = 'salu'
            self.src = U(range(0, n))
        elif mn.startswith('s_load') or mn.startswith('s_buffer_load') or mn in ('s_memtime', 's_memrealtime'):
            self.cls = 'smem'
            self.dst = U([0])
            self.src = U(range(1, n))
        elif mn.startswith('s_'):
            self.cls = 'salu'
            self.dst = U([0])
            self.src = U(range(1, n))
            if 'saveexec' in mn:
                self.dst |= parse_reg('exec')
            if mn in ('s_addk_i32', 's_mulk_i32'):
                self.src |= self.dst
        else:
            raise ValueError('cannot classify: ' + text)


def isv(r):
    return r[0] in 'va'


def need(prev, cur):
    n = 0
    pc, cc = prev.cls, cur.cls
    if pc == 'valu':
        wv = {r for r in prev.dst if isv(r)}
        ws = {r for r in prev.dst if r[0] == 's'}
        if cc == 'mfma':
            if wv & cur.src:
                n = max(n, 2)
            if ('s', 'exec_lo') in ws:
                n = max(n, 4)
        if cc == 'valu':
            if cur.dpp and (wv & cur.src):
                n = max(n, 2)
            if cur.dpp and ('s', 'exec_lo') in ws:
                n = max(n, 5)
            if cur.mn in ('v_readlane_b32', 'v_readfirstlane_b32') and (wv & cur.src):
                n = max(n, 1)
            if cur.mn.startswith('v_permlane') and (wv & cur.src):
                n = max(n, 2)
            if ws & cur.src:
                n = max(n, 2)
            if ws & cur.lanesel:
                n = max(n, 4)
            if cur.mn == 'v_div_fmas_f32' and (ws & cur.src):
                n = max(n, 4)
            if prev.mn in TRANS and cur.mn not in TRANS and (wv & cur.src):
                n = max(n, 1)
            if prev.mn in TRANS and cur.mn in TRANS and (wv & cur.src):
                n = max(n, 1)
            if ('sdwa' in prev.text or 'op_sel' in prev.text) and not prev.mn.startswith('v_pk') and (wv & (cur.src | cur.dst)):
                n = max(n, 1)
            if prev.mn.startswith('v_cmpx') and cur.mn in ('v_readlane_b32', 'v_readfirstlane_b32', 'v_writelane_b32'):
                n = max(n, 4)
            if prev.mn.startswith('v_cmpx') and cur.mn.startswith('v_permlane'):
                n = max(n, 4)
        if prev.mn.startswith('v_dot') and (wv & (cur.src | cur.dst)):
            same_c = False
            if cur.mn == prev.mn:
                ops = split_ops(cur.text.split(';')[0].strip().split(None, 1)[1])
                ab = parse_reg(ops[1]) | parse_reg(ops[2].split()[0])
                same_c = not (wv & ab)
            if not same_c:
                n = max(n, 3)
        if cc == 'vmem' and (ws & cur.src):
            n = max(n, 5)
        if cc in ('salu', 'smem', 'branch') and (ws & cur.src or (cc == 'branch' and ws)):
            n = max(n, 2)
        if prev.mn in TRANS and cc in ('vmem', 'ds', 'mfma') and (wv & cur.src):
            n = max(n, 2)
    if pc == 'mfma':
        P = prev.passes
        big = {4: 8, 8: 12}[P]
        if cc == 'mfma':
            if prev.dst & cur.ab:
                n = max(n, big)
            if prev.dst & cur.srcc:
                if not (prev.dst == cur.srcc and prev.passes == cur.passes):
                    n = max(n, {4: 6, 8: 10}[P])
            if (prev.dst & cur.dst) and not (prev.dst == cur.dst):
                n = max(n, big)
            if (prev.dst & cur.dst) and prev.dst != cur.srcc:
                n = max(n, big if prev.passes != cur.passes else 0)
        elif cc in ('valu', 'vmem', 'ds'):
            if prev.dst & (cur.src | cur.dst):
                n = max(n, big)
            if cc == 'valu' and (prev.srcc & cur.dst):
                n = max(n, {4: 3, 8: 7}[P])
            if cc in ('ds', 'vmem') and (prev.srcc & cur.dst):
                n = max(n, {4: 3, 8: 7}[P])
    if pc == 'vmem' and prev.wide_store:
        if cc == 'valu' and (prev.sdata & cur.dst):
            n = max(n, 2)
        elif prev.sdata & cur.dst:
            n = max(n, 1)
    if pc == 'salu' and ('s', 'm0') in prev.dst:
        if cur.lds_dma or cur.mn.startswith('s_movrel') or 'addtid' in cur.mn:
            n = max(n, 1)
    return n


MAXW = 14


class Asm:
    def __init__(self):
        self.lines = []
        self.uid = 0

    def __call__(self, text):
        for l in text.split('\n'):
            l = l.strip()
            if l:
                self.lines.append(l)

    def label(self, name):
        self.lines.append(name + ':')

    def newlabel(self, base):
        self.uid += 1
        return f'{base}_{self.uid}'

    def comment(self, c):
        self.lines.append('; ' + c)

    def finalize(self, verbose=False):
        ins = []
        for l in self.lines:
            if l.startswith(';'):
                i = Ins('')
                i.text = l
                ins.append(i)
            else:
                ins.append(Ins(l))
        out = []
        nins = 0

        def lookback(seq, cur):
            dist = 0
            miss = 0
            for p in reversed(seq):
                if p.cls in ('label', 'dir'):
                    continue
                r = need(p, cur)
                if r > dist:
                    miss = max(miss, r - dist)
                dist += p.states
                if dist >= MAXW:
                    break
                if p.mn in ('s_branch', 's_endpgm'):
                    break
            return miss
        for cur in ins:
            if cur.cls in ('label', 'dir'):
                out.append(cur)
                continue
            miss = lookback(out[-40:], cur)
            if miss > 0:
                out.append(Ins(f's_nop {miss - 1}'))
                nins += 1
            out.append(cur)
        labels = {i.label: k for k, i in enumerate(out) if i.cls == 'label'}
        fixes = []
        for k, i in enumerate(out):
            if i.cls == 'branch' and i.target in labels:
                t = labels[i.target]
                pre = [p for p in out[max(0, k - 40):k + 1]]
                worst = 0
                seq = list(pre)
                seq[-1] = Ins('s_nop 0')
                cnt = 0
                for c in out[t:t + 40]:
                    if c.cls in ('label', 'dir'):
                        continue
                    worst = max(worst, lookback(seq, c))
                    seq.append(c)
                    cnt += c.states
                    if cnt >= MAXW or c.mn in ('s_branch', 's_endpgm'):
                        break
                if worst > 0:
                    fixes.append((k, worst))
        for k, w in reversed(fixes):
            out.insert(k, Ins(f's_nop {w - 1}'))
            nins += 1
        if verbose:
            print(f'inserted {nins} nops')
        res = []
        for i in out:
            if i.cls == 'label':
                res.append(i.text)
            elif i.text.startswith('.') or i.text.startswith(';'):
                res.append(i.text)
            else:
                res.append('  ' + i.text)
        return '\n'.join(res) + '\n'

    def maxregs(self):
        mv = ma = ms = -1
        for l in self.lines:
            if l.startswith(';') or l.startswith('.'):
                continue
            i = Ins(l)
            for k, x in i.dst | i.src:
                if isinstance(x, int):
                    if k == 'v':
                        mv = max(mv, x)
                    elif k == 'a':
                        ma = max(ma, x)
                    else:
                        ms = max(ms, x)
        return mv + 1, ma + 1, ms + 1


def v(i, n=1):
    return f'v{i}' if n == 1 else f'v[{i}:{i + n - 1}]'


def a(i, n=1):
    return f'a{i}' if n == 1 else f'a[{i}:{i + n - 1}]'


def s(i, n=1):
    return f's{i}' if n == 1 else f's[{i}:{i + n - 1}]'


class Alloc:
    def __init__(self, start=0, limit=256):
        self.n = start
        self.limit = limit

    def __call__(self, cnt=1, align=1):
        if cnt > 1 and align == 1:
            align = 2
        self.n = (self.n + align - 1) // align * align
        r = self.n
        self.n += cnt
        assert self.n <= self.limit, 'out of registers'
        return r


def kernel_text(name, asm, accum_offset=None, verbose=False, minv=0):
    body = asm.finalize(verbose)
    nv, na, ns = asm.maxregs()
    nv = max(nv, minv)
    if accum_offset is None:
        accum_offset = max(4, (nv + 3) // 4 * 4)
    assert nv <= accum_offset, (nv, accum_offset)
    nfv = accum_offset + na if na > 0 else max(nv, accum_offset)
    text = f'.globl {name}\n.p2align 8\n.type {name},@function\n{name}:\n' + body
    desc = f""".amdhsa_kernel {name}
  .amdhsa_next_free_vgpr {nfv}
  .amdhsa_next_free_sgpr {max(ns, 16)}
  .amdhsa_accum_offset {accum_offset}
  .amdhsa_group_segment_fixed_size 0
  .amdhsa_kernarg_size 88
  .amdhsa_user_sgpr_count 2
  .amdhsa_user_sgpr_kernarg_segment_ptr 1
  .amdhsa_system_sgpr_workgroup_id_x 1
  .amdhsa_float_denorm_mode_32 3
.end_amdhsa_kernel
"""
    if verbose:
        print(f'{name}: vgpr {nv} agpr {na} sgpr {ns} accum_offset {accum_offset} nfv {nfv}')
    return text, desc


STAMP_OFF = 64 << 20
SB = 76


class Stamps:
    def __init__(self, on, kidx, sets=None):
        self.on = on
        self.kidx = kidx
        self.sets = sets

    def take(self, A, j, group=None):
        if self.on and (group is None or self.sets is None or group in self.sets):
            A(f'{"s_memtime" if self.on == 2 else "s_memrealtime"} s[{SB + 8 + 2 * j}:{SB + 9 + 2 * j}]')

    def flush(self, A, js, s_ws, s_wave, wadd=0, vt=2, waitst=True):
        if not self.on:
            return
        if waitst:
            A('s_waitcnt vmcnt(0)')
        self.take(A, js[-1])
        A(f's_add_u32 s{SB}, s{s_ws}, {STAMP_OFF:#x}')
        A(f's_addc_u32 s{SB + 1}, s{s_ws + 1}, 0')
        A(f's_and_b32 s{SB + 1}, s{SB + 1}, 0xffff')
        A(f's_mov_b32 s{SB + 2}, 0x100000')
        A(f's_mov_b32 s{SB + 3}, 0x20000')
        A(f's_lshl_b32 s{SB + 4}, s2, 3')
        A(f's_add_u32 s{SB + 4}, s{SB + 4}, s{s_wave}')
        A(f's_lshl_b32 s{SB + 4}, s{SB + 4}, 6')
        A(f's_add_u32 s{SB + 4}, s{SB + 4}, {self.kidx * 256 * 8 * 64 + wadd * 64}')
        A(f'v_mov_b32 v{vt + 2}, 0')
        A('s_waitcnt lgkmcnt(0)')
        for j in js:
            A(f'v_mov_b32 v{vt}, s{SB + 8 + 2 * j}')
            A(f'v_mov_b32 v{vt + 1}, s{SB + 9 + 2 * j}')
            A(f'buffer_store_dwordx2 v[{vt}:{vt + 1}], v{vt + 2}, s[{SB}:{SB + 3}], s{SB + 4} offen offset:{j * 8}')
            A('s_waitcnt vmcnt(0)')


def merge(A, subs):
    ls = [list(s.lines) for s in subs]
    n = max(len(l) for l in ls)
    for i in range(n):
        for l in ls:
            if i < len(l):
                A.lines.append(l[i])
```

```python
from asmlib import *
from gemm import make_srd
from model import OFF_T, OFF_T2, OFF_S, OFF_H, OFF_ST, OFF_WP, OFF_WC
from fft import fl, wave_reduce2, trig_pairs, XROW, P_OFF, VROW, GRP, XS_OFF, YS_OFF, MID_LDS

P_X, P_WR, P_WI, P_W1, P_B1, P_W2, P_B2 = 60, 62, 64, 68, 70, 72, 74
P_OUT, P_DBG, P_WS = 52, 54, 50
SRD_WS = 56
S_W = 5


FLG = 156 * 1024


def lds_sync(A, v0, v1, n):
    L0, L1 = A.newlabel('lsync'), A.newlabel('lsynced')
    A(f'v_mov_b32 v{v0}, {FLG}')
    A(f'v_mov_b32 v{v1}, 1')
    A('s_mov_b32 s28, 0')
    A('s_waitcnt lgkmcnt(0)')
    A('s_mov_b64 exec, 1')
    A(f'ds_add_rtn_u32 v{v1}, v{v0}, v{v1}')
    A('s_waitcnt lgkmcnt(0)')
    A(f'v_add_u32 v{v1}, 1, v{v1}')
    A.label(L0)
    A(f'v_readfirstlane_b32 s29, v{v1}')
    A(f's_cmp_ge_u32 s29, {n}')
    A(f's_cbranch_scc1 {L1}')
    A(f'ds_read_b32 v{v1}, v{v0}')
    A('s_add_u32 s28, s28, 1')
    A(f's_cmp_lt_u32 s28, {1 << 16}')
    A('s_waitcnt lgkmcnt(0)')
    A(f's_cbranch_scc1 {L0}')
    A.label(L1)
    A('s_mov_b64 exec, -1')


def ws_srd(A):
    make_srd(A, SRD_WS, P_WS, 48 << 20)


def p1_rows(A, cfg, ST, LB):
    ts = 'sc1'
    SRD_X, SRD_O = 16, SRD_WS
    S_X = P_X
    R = Alloc(1, 200)
    vL16 = R()
    CA = R(8, 4)
    SA = R(8, 4)
    CB = R(8, 4)
    SB_ = R(8, 4)
    TR = R(16, 2)
    TI = R(16, 2)
    M8 = R(2, 2)
    vA = R(8)
    XD = [R(8, 4), R(8, 4)]
    YR = [R(16, 4), R(16, 4)]
    YI = [R(16, 4), R(16, 4)]
    TM = [R(8, 4), R(8, 4)]
    XB = R(16, 4)
    tmp = TM[0]
    A(f'v_lshlrev_b32 v{vL16}, 4, v0')
    A(f's_lshl_b32 s28, s{S_W}, 8')
    A('s_add_u32 s28, s28, s2')
    A('s_lshl_b32 s28, s28, 11')
    A(f's_add_u32 s29, s28, {4 * 256 * 2048}')
    A('s_waitcnt lgkmcnt(0)')
    make_srd(A, SRD_X, S_X, 4 << 20)
    for z in range(2):
        A(f'buffer_load_dwordx4 v[{XD[z]}:{XD[z] + 3}], v{vL16}, s[{SRD_X}:{SRD_X + 3}], s{28 + z} offen')
        A(f'buffer_load_dwordx4 v[{XD[z] + 4}:{XD[z] + 7}], v{vL16}, s[{SRD_X}:{SRD_X + 3}], s{28 + z} offen offset:1024')
    A('s_barrier')
    ws_srd(A)

    vh, vc, vf, vb = YR[0], YR[0] + 1, YR[0] + 2, YR[0] + 3
    A(f'v_lshrrev_b32 v{vh}, 5, v0')
    A(f'v_and_b32 v{vc}, 31, v0')
    A(f'v_cvt_f32_u32 v{vh}, v{vh}')
    A(f'v_cvt_f32_u32 v{vf}, v{vc}')
    A(f'v_mul_f32 v{vf}, {fl(1 / 32)}, v{vf}')
    A(f'v_mul_f32 v{vb}, {fl(8.0)}, v{vh}')
    A(f'v_mul_f32 v{vb}, v{vb}, v{vf}')
    trig_pairs(A, CA, SA, lambda i, r: A(f'v_fmamk_f32 v{r}, v{vf}, {fl(16 * (i >> 3) + (i & 7))}, v{vb}'), 16, tmp, True)
    A(f'v_mul_f32 v{vf}, {fl(1 / 32)}, v{vf}')
    A(f'v_mul_f32 v{vb}, {fl(4.0)}, v{vh}')
    A(f'v_mul_f32 v{vb}, v{vb}, v{vf}')
    for i in range(16):
        t = tmp + (i & 1)
        A(f'v_fmamk_f32 v{t}, v{vf}, {fl(8 * (i >> 2) + (i & 3))}, v{vb}')
        A(f'v_cos_f32 v{TR + i}, v{t}')
        A(f'v_sin_f32 v{TI + i}, -v{t}')
    A(f'v_lshrrev_b32 v{vf}, 1, v{vc}')
    A(f'v_cvt_f32_u32 v{vf}, v{vf}')
    A(f'v_mul_f32 v{vf}, {fl(1 / 32)}, v{vf}')
    A(f'v_and_b32 v{vc}, 1, v{vc}')
    A(f'v_cvt_f32_u32 v{vc}, v{vc}')
    A(f'v_mul_f32 v{vb}, {fl(4.0)}, v{vh}')
    A(f'v_mul_f32 v{vb}, v{vb}, v{vf}')
    A(f'v_fmac_f32 v{vb}, {fl(0.25)}, v{vc}')
    trig_pairs(A, CB, SB_, lambda i, r: A(f'v_fmamk_f32 v{r}, v{vf}, {fl(16 * (i >> 3) + 8 * ((i >> 2) & 1) + (i & 3))}, v{vb}'), 16, tmp)
    A(f'v_bfe_u32 v{vf}, v0, 1, 3')
    A(f'v_cvt_f32_u32 v{vf}, v{vf}')
    A(f'v_lshrrev_b32 v{vh}, 4, v0')
    A(f'v_lshlrev_b32 v{vh}, 9, v{vh}')
    A(f'v_add_u32 v{vh}, s2, v{vh}')
    A(f'v_cvt_f32_u32 v{vh}, v{vh}')
    A(f'v_mul_f32 v{vh}, {fl(1 / 2048)}, v{vh}')
    A(f'v_mul_f32 v{vb}, v{vh}, v{vf}')
    A(f'v_fmac_f32 v{vb}, {fl(0.25)}, v{vc}')
    A(f'v_fmamk_f32 v{vh}, v{vf}, {fl(1 / 8)}, v{vb}')
    A(f'v_cos_f32 v{tmp}, v{vb}')
    A(f'v_sin_f32 v{tmp + 1}, v{vb}')
    A(f'v_cos_f32 v{tmp + 2}, v{vh}')
    A(f'v_sin_f32 v{tmp + 3}, v{vh}')
    A(f'v_cvt_pk_bf16_f32 v{M8}, v{tmp}, v{tmp + 1}')
    A(f'v_cvt_pk_bf16_f32 v{M8 + 1}, v{tmp + 2}, v{tmp + 3}')
    vWr, vTr, vPw, vPr, vXr, vXo, vTo = range(vA, vA + 7)
    A(f's_mul_i32 s29, s{S_W}, {XROW}')
    A(f's_add_u32 s29, s29, {LB}')
    A(f'v_add_u32 v{vWr}, s29, v{vL16}')
    A(f'v_lshrrev_b32 v{tmp}, 5, v0')
    A(f'v_lshlrev_b32 v{tmp}, 9, v{tmp}')
    A(f'v_bfe_u32 v{tmp + 1}, v0, 2, 2')
    A(f'v_lshl_add_u32 v{tmp}, v{tmp + 1}, 6, v{tmp}')
    A(f'v_bfe_u32 v{tmp + 1}, v0, 4, 1')
    A(f'v_lshl_add_u32 v{tmp}, v{tmp + 1}, 5, v{tmp}')
    A(f'v_and_b32 v{tmp + 1}, 3, v0')
    A(f'v_lshl_add_u32 v{tmp}, v{tmp + 1}, 3, v{tmp}')
    A(f'v_add_u32 v{vTr}, s29, v{tmp}')
    A(f's_lshl_b32 s29, s{S_W}, 11')
    A(f's_lshr_b32 s30, s{S_W}, 1')
    A(f's_lshl_b32 s30, s30, 3')
    A(f's_add_u32 s29, s29, s30')
    A(f's_add_u32 s29, s29, {P_OFF + LB}')
    A(f'v_and_b32 v{tmp}, 31, v0')
    A(f'v_lshrrev_b32 v{tmp + 1}, 5, v0')
    A(f'v_lshl_add_u32 v{tmp}, v{tmp + 1}, 6, v{tmp}')
    A(f'v_lshl_add_u32 v{vPw}, v{tmp}, 2, s29')
    A(f'v_lshrrev_b32 v{tmp}, 4, v0')
    A(f'v_lshlrev_b32 v{tmp + 1}, 12, v{tmp}')
    A(f'v_and_b32 v{tmp + 2}, 1, v{tmp}')
    A(f'v_lshl_add_u32 v{tmp + 1}, v{tmp + 2}, 3, v{tmp + 1}')
    A(f'v_lshrrev_b32 v{tmp + 2}, 1, v{tmp}')
    A(f'v_lshl_add_u32 v{tmp + 1}, v{tmp + 2}, 6, v{tmp + 1}')
    A(f'v_bfe_u32 v{tmp + 2}, v0, 2, 1')
    A(f'v_lshl_add_u32 v{tmp + 1}, v{tmp + 2}, 7, v{tmp + 1}')
    A(f'v_and_b32 v{tmp + 2}, 3, v0')
    A(f'v_lshl_add_u32 v{tmp + 1}, v{tmp + 2}, 4, v{tmp + 1}')
    A(f'v_bfe_u32 v{tmp + 2}, v0, 3, 1')
    A(f'v_lshl_add_u32 v{tmp + 1}, v{tmp + 2}, 2, v{tmp + 1}')
    A(f's_lshl_b32 s29, s{S_W}, 9')
    A(f's_add_u32 s29, s29, {P_OFF + LB}')
    A(f'v_add_u32 v{vPr}, s29, v{tmp + 1}')
    A(f's_lshl_b32 s36, s2, 3')
    A(f's_add_u32 s36, s36, s{S_W}')
    A(f's_lshl_b32 s36, s36, 3')
    A(f's_add_u32 s36, s36, {OFF_ST}')
    A(f'v_bfe_u32 v{tmp}, v0, 1, 3')
    A(f'v_lshlrev_b32 v{vTo}, 19, v{tmp}')
    A(f'v_lshrrev_b32 v{tmp}, 5, v0')
    A(f'v_lshl_add_u32 v{vTo}, v{tmp}, 6, v{vTo}')
    A(f'v_and_b32 v{tmp}, 1, v0')
    A(f'v_lshl_add_u32 v{vTo}, v{tmp}, 5, v{vTo}')
    A(f'v_bfe_u32 v{tmp}, v0, 4, 1')
    A(f'v_lshl_add_u32 v{vTo}, v{tmp}, 4, v{vTo}')
    A(f's_and_b32 s38, s2, 15')
    A(f's_lshl_b32 s38, s38, 4')
    A(f's_lshr_b32 s32, s2, 4')
    A(f's_add_u32 s38, s38, s32')
    A(f's_lshl_b32 s38, s38, 8')
    A(f's_lshl_b32 s32, s{S_W}, 17')
    A(f's_add_u32 s38, s38, s32')
    A(f's_add_u32 s38, s38, {OFF_T}')
    A(f's_add_u32 s39, s38, 65536')
    A(f's_mov_b32 s30, 0x3f803f80')
    A(f's_mov_b32 s31, 0xffff0000')
    for z in range(2):
        A(f'v_mov_b32 v{TM[z]}, 0')
        A(f'v_mov_b32 v{TM[z] + 1}, 0')
    ST.take(A, 1, 'p1')
    A('s_waitcnt vmcnt(0)')
    ST.take(A, 2, 'p1')

    def ln(z):
        A = Asm()
        vXD, U, tmp = XD[z], YR[z], TM[z]
        sa, sb = 40 + 2 * z, 41 + 2 * z
        s1_, s2_ = tmp, tmp + 1
        for i in range(8):
            A(f'v_dot2_f32_bf16 v{s1_}, v{vXD + i}, s30, v{s1_}')
            A(f'v_dot2_f32_bf16 v{s2_}, v{vXD + i}, v{vXD + i}, v{s2_}')
        wave_reduce2(A, s1_, s2_)
        for i in range(8):
            A(f'v_lshlrev_b32 v{U + 2 * i}, 16, v{vXD + i}')
            A(f'v_and_b32 v{U + 2 * i + 1}, s31, v{vXD + i}')
        A(f'v_readlane_b32 s{sa}, v{s1_}, 63')
        A(f'v_readlane_b32 s{sb}, v{s2_}, 63')
        mu, va = tmp + 2, tmp + 4
        A(f'v_mov_b32 v{mu}, {fl(1 / 1024)}')
        A(f'v_mul_f32 v{va}, s{sb}, v{mu}')
        A(f'v_mul_f32 v{mu}, s{sa}, v{mu}')
        A(f'v_fma_f32 v{va}, -v{mu}, v{mu}, v{va}')
        A(f'v_max_f32 v{va}, 0, v{va}')
        A(f'v_cvt_pk_bf16_f32 v{mu}, v{mu}, v{va}')
        A(f'v_and_b32 v{va}, s31, v{mu}')
        A(f'v_lshlrev_b32 v{mu}, 16, v{mu}')
        A(f'v_add_f32 v{va}, {fl(1e-5)}, v{va}')
        A(f'v_cvt_pk_bf16_f32 v{va}, v{va}, v{va}')
        A(f'v_and_b32 v{va}, s31, v{va}')
        A(f'v_sqrt_f32 v{va}, v{va}')
        for i in range(8):
            A(f'v_pk_add_f32 v[{U + 2 * i}:{U + 2 * i + 1}], v[{U + 2 * i}:{U + 2 * i + 1}], v[{mu}:{mu + 1}] op_sel_hi:[1,0] neg_lo:[0,1] neg_hi:[0,1]')
        A(f'v_cvt_pk_bf16_f32 v{va}, v{va}, v{va}')
        A(f'v_and_b32 v{va}, s31, v{va}')
        A(f'v_cvt_pk_bf16_f32 v{tmp + 6}, -v{mu}, v{va}')
        A(f'v_rcp_f32 v{va}, v{va}')
        for i in range(8):
            A(f'v_cvt_pk_bf16_f32 v{vXD + i}, v{U + 2 * i}, v{U + 2 * i + 1}')
        for i in range(8):
            A(f'v_lshlrev_b32 v{U + 2 * i}, 16, v{vXD + i}')
            A(f'v_and_b32 v{U + 2 * i + 1}, s31, v{vXD + i}')
        for i in range(8):
            A(f'v_pk_mul_f32 v[{U + 2 * i}:{U + 2 * i + 1}], v[{U + 2 * i}:{U + 2 * i + 1}], v[{va}:{va + 1}] op_sel_hi:[1,0]')
        A(f'v_mul_f32 v{tmp + 7}, v{va}, v{va}')
        for i in range(8):
            A(f'v_cvt_pk_bf16_f32 v{vXD + i}, v{U + 2 * i}, v{U + 2 * i + 1}')
            if i == 3:
                A(f'ds_write_b128 v{vWr}, v[{vXD}:{vXD + 3}] offset:{z * 4 * XROW}')
        A(f'ds_write_b128 v{vWr}, v[{vXD + 4}:{vXD + 7}] offset:{1024 + z * 4 * XROW}')
        return A
    merge(A, [ln(0), ln(1)])
    A('s_waitcnt lgkmcnt(0)')
    for z in range(2):
        for kk in range(2):
            for t in range(2):
                d = XD[z] + 4 * kk + 2 * t
                A(f'ds_read_b64_tr_b16 v[{d}:{d + 1}], v{vTr} offset:{kk * 1024 + t * 256 + z * 4 * XROW}')
    A('s_mov_b64 exec, 1')
    for z in range(2):
        A(f'buffer_store_dwordx2 v[{TM[z] + 6}:{TM[z] + 7}], off, s[{SRD_O}:{SRD_O + 3}], s36 offset:{32 * z} sc1')
    A('s_mov_b64 exec, -1')
    for z in range(2):
        A(f's_waitcnt lgkmcnt({4 - 4 * z})')
        for kk in range(2):
            for (Y, C) in ((YR[z], CA), (YI[z], SA)):
                A(f'v_mfma_f32_32x32x16_bf16 v[{Y}:{Y + 15}], v[{XD[z] + 4 * kk}:{XD[z] + 4 * kk + 3}], v[{C + 4 * kk}:{C + 4 * kk + 3}], ' + ('0' if kk == 0 else f'v[{Y}:{Y + 15}]'))
    ST.take(A, 3, 'p1')
    A(f'v_cmp_eq_u32 vcc, 0, v0')

    def tw(z):
        A = Asm()
        tmp = TM[z]
        sa, sb = 40 + 2 * z, 41 + 2 * z
        ny = tmp + 2
        Yr, Yi = YR[z], YI[z]
        A(f'v_pk_add_f32 v[{ny}:{ny + 1}], v[{Yr}:{Yr + 1}], v[{Yr + 2}:{Yr + 3}]')
        for q in range(2, 8):
            A(f'v_pk_add_f32 v[{ny}:{ny + 1}], v[{ny}:{ny + 1}], v[{Yr + 2 * q}:{Yr + 2 * q + 1}]')
        A(f'v_sub_f32 v{ny}, v{ny}, v{ny + 1}')
        PR, PI = XD[z], XB + 8 * z
        for q in range(8):
            yr, yi, tr, ti = (f'v[{x + 2 * q}:{x + 2 * q + 1}]' for x in (Yr, Yi, TR, TI))
            a0 = tmp + 4 if q & 1 else tmp
            t0 = f'v[{a0}:{a0 + 1}]'
            A(f'v_pk_mul_f32 {t0}, {yr}, {tr}')
            A(f'v_pk_mul_f32 {yr}, {yr}, {ti}')
            A(f'v_pk_fma_f32 {t0}, {yi}, {ti}, {t0} neg_lo:[1,0,0] neg_hi:[1,0,0]')
            A(f'v_pk_fma_f32 {yr}, {yi}, {tr}, {yr}')
            A(f'v_cvt_pk_bf16_f32 v{PR + q}, v{a0}, v{a0 + 1}')
            A(f'v_cvt_pk_bf16_f32 v{PI + q}, v{Yr + 2 * q}, v{Yr + 2 * q + 1}')
            if q == 0:
                A(f'v_readlane_b32 s{sa}, v{ny}, 0')
                A(f'v_readlane_b32 s{sb}, v{ny}, 32')
        X = Yi
        seq = [(CB, PR, 0), (SB_, PI, 0), (CB, PR, 1), (SB_, PI, 1)]
        for n, (c, d, kk) in enumerate(seq):
            A(f'v_mfma_f32_32x32x16_bf16 v[{X}:{X + 15}], v[{c + 4 * kk}:{c + 4 * kk + 3}], v[{d + 4 * kk}:{d + 4 * kk + 3}], ' + ('0' if n == 0 else f'v[{X}:{X + 15}]'))
        A(f'v_mov_b32 v{ny}, s{sa}')
        A(f'v_add_f32 v{ny}, s{sb}, v{ny}')
        return A

    def pw(z):
        A = Asm()
        X, Yr, ny = YI[z], YR[z], TM[z] + 2
        A(f'v_cndmask_b32 v{X + 1}, v{X + 1}, v{ny}, vcc')
        for q in range(8):
            A(f'v_cvt_pk_bf16_f32 v{Yr + q}, v{X + 2 * q}, v{X + 2 * q + 1}')
            A(f'ds_write_b32 v{vPw}, v{Yr + q} offset:{(q >> 1) * 512 + (q & 1) * 128 + z * (8192 + 64)}')
        return A
    t0, t1 = tw(0), tw(1)
    A.lines += t0.lines
    A.lines += t1.lines
    A.lines += pw(0).lines
    A.lines += pw(1).lines
    for t in range(1, 4):
        A(f'v_add_u32 v{tmp + t}, {(16 * (t & 1) + 2 * (t >> 1)) * 4}, v{vPr}')
    lds_sync(A, TM[1], TM[1] + 1, 4)
    ST.take(A, 4, 'p1')
    for z in range(2):
        for t in range(4):
            A(f'ds_read2st64_b32 v[{XD[z] + 2 * t}:{XD[z] + 2 * t + 1}], v{tmp + t if t else vPr} offset0:{z} offset1:{8 + z}')
    for z in range(2):
        for t in range(4):
            A(f's_waitcnt lgkmcnt({7 - 4 * z - t})')
            A(f'v_mfma_f32_16x16x16_bf16 v[{YI[z] + 4 * t}:{YI[z] + 4 * t + 3}], v[{XD[z] + 2 * t}:{XD[z] + 2 * t + 1}], v[{M8}:{M8 + 1}], 0')
    for z in range(2):
        for t in range(4):
            A(f'v_cvt_pk_bf16_f32 v{YR[z] + 2 * t}, v{YI[z] + 4 * t}, v{YI[z] + 4 * t + 1}')
            A(f'v_cvt_pk_bf16_f32 v{YR[z] + 2 * t + 1}, v{YI[z] + 4 * t + 2}, v{YI[z] + 4 * t + 3}')
            if t & 1:
                A(f'buffer_store_dwordx4 v[{YR[z] + 2 * t - 2}:{YR[z] + 2 * t + 1}], v{vTo}, s[{SRD_O}:{SRD_O + 3}], s{38 + z} offen offset:{(t >> 1) * 128} {ts}')
    ST.take(A, 5, 'p1')


def repack_load(A, D, va, sa=8, sb=12):
    make_srd(A, sa, P_WR, 2048 * 513 * 2)
    make_srd(A, sb, P_WI, 2048 * 513 * 2)
    SA_, SB__ = f's[{sa}:{sa + 3}]', f's[{sb}:{sb + 3}]'
    A(f'v_lshlrev_b32 v{va}, 3, v0')
    A('s_mul_i32 s28, s2, 8208')
    A(f'v_bfe_u32 v{va + 1}, v0, 1, 3')
    A(f'v_mul_u32_u24 v{va + 1}, 1026, v{va + 1}')
    A(f'v_and_b32 v{va + 2}, 1, v0')
    A(f'v_lshl_add_u32 v{va + 1}, v{va + 2}, 10, v{va + 1}')
    A(f'buffer_load_ushort v{va + 2}, v{va + 1}, {SA_}, s28 offen')
    A(f'buffer_load_ushort v{va + 3}, v{va + 1}, {SB__}, s28 offen')
    for r in range(8):
        for h in range(2):
            d = D + (2 * r + h) * 4
            A(f'buffer_load_dwordx2 v[{d}:{d + 1}], v{va}, {SA_}, s28 offen offset:{h * 512}')
            A(f'buffer_load_dwordx2 v[{d + 2}:{d + 3}], v{va}, {SB__}, s28 offen offset:{h * 512}')
        if r < 7:
            A('s_add_u32 s28, s28, 1026')


def repack_store(A, D, va, nyounger=0):
    W_ = f's[{SRD_WS}:{SRD_WS + 3}]'
    A(f'v_lshrrev_b32 v{va}, 4, v0')
    A(f'v_lshlrev_b32 v{va}, 16, v{va}')
    A(f'v_and_b32 v{va + 1}, 15, v0')
    A(f'v_lshl_add_u32 v{va}, v{va + 1}, 4, v{va}')
    A('s_and_b32 s28, s2, 15')
    A('s_lshl_b32 s28, s28, 12')
    A('s_bfe_u32 s29, s2, 0x20004')
    A('s_lshl_b32 s29, s29, 10')
    A('s_add_u32 s28, s28, s29')
    A('s_lshr_b32 s29, s2, 6')
    A('s_lshl_b32 s29, s29, 8')
    A('s_add_u32 s28, s28, s29')
    if OFF_WP:
        A(f's_add_u32 s28, s28, {OFF_WP}')
    for n in range(16):
        A(f's_waitcnt vmcnt({min(63, nyounger + 2 * (15 - n) + n)})')
        A(f'buffer_store_dwordx4 v[{D + 4 * n}:{D + 4 * n + 3}], v{va}, {W_}, s28 offen sc1')
        if n < 15:
            A(f's_add_u32 s28, s28, {1 << 18}')
    A(f'v_lshrrev_b32 v{va}, 1, v{va + 1}')
    A(f'v_lshlrev_b32 v{va}, 11, v{va}')
    A(f'v_and_b32 v{va + 1}, 1, v0')
    A(f'v_lshl_add_u32 v{va}, v{va + 1}, 2, v{va}')
    A('s_lshl_b32 s28, s2, 3')
    A(f's_add_u32 s28, s28, {OFF_WC}')
    A('s_mov_b64 exec, 0xffff')
    A(f'buffer_store_short v{va + 2}, v{va}, {W_}, s28 offen sc1')
    A(f'buffer_store_short v{va + 3}, v{va}, {W_}, s28 offen offset:2 sc1')
    A('s_mov_b64 exec, -1')


def mid_body(A, cfg, ST, S_Q, S_CL, pre=None, wait_t=None):
    t2s = 'sc1'
    S_OM, S_K1A, S_GB = 6, 7, 12
    SRD_T = SRD_WS
    A(f's_and_b32 s{S_OM}, s{S_W}, 3')
    A(f's_sub_u32 s28, 8, s{S_CL}')
    A(f's_cmp_eq_u32 s{S_CL}, 0')
    A(f's_cselect_b32 s28, 4, s28')
    A(f's_cmp_ge_u32 s{S_W}, 4')
    A(f's_cselect_b32 s{S_K1A}, s28, s{S_CL}')
    A(f's_cselect_b32 s{S_GB}, {GRP}, 0')
    R = Alloc(1, 192)
    vg, vi = R(), R()
    vT2 = R()
    vRd = R(4)
    vP = R(8)
    vR2, vW2 = R(2), R(2)
    vk, vkp = R(), R()
    SW = R(8, 2)
    B1R, B1I, B4R, B4I = R(4, 4), R(4, 4), R(4, 4), R(4, 4)
    WR = R(64, 4)
    FR = [R(16, 4), R(16, 4)]
    AC = R(32, 4)
    tmp = R(16, 4)
    A2, B3 = 0, 32
    A(f'v_lshrrev_b32 v{vg}, 4, v0')
    A(f'v_and_b32 v{vi}, 15, v0')
    A(f'v_bfe_u32 v{tmp + 1}, v0, 2, 2')
    A(f'v_xor_b32 v{tmp + 1}, v{tmp + 1}, v{vg}')
    A(f'v_lshlrev_b32 v{tmp + 1}, 6, v{tmp + 1}')
    A(f'v_lshl_add_u32 v{tmp + 1}, v{vg}, 8, v{tmp + 1}')
    A(f'v_and_b32 v{tmp + 2}, 3, v0')
    A(f'v_lshl_add_u32 v{tmp + 1}, v{tmp + 2}, 4, v{tmp + 1}')
    A(f's_lshl_b32 s29, s{S_K1A}, 19')
    A(f's_lshl_b32 s30, s{S_Q}, 16')
    A(f's_add_u32 s29, s29, s30')
    A(f's_lshl_b32 s30, s{S_OM}, 14')
    A(f's_add_u32 s29, s29, s30')
    A(f's_add_u32 s29, s29, {OFF_T}')
    A(f's_mul_i32 s30, s{S_OM}, {4 * VROW}')
    A(f's_add_u32 s30, s30, s{S_GB}')
    A(f's_add_u32 s34, s29, {(OFF_WP - OFF_T) & 0xffffffff:#x}')
    A(f'v_lshlrev_b32 v{tmp}, 4, v0')

    def load_t():
        for vv in range(4):
            A(f's_add_u32 m0, s30, {vv * VROW}')
            A(f's_add_u32 s31, s29, {vv * 4096}')
            for i in range(4):
                A(f'buffer_load_dwordx4 v{tmp + 1}, s[{SRD_T}:{SRD_T + 3}], s31 offen offset:{i * 1024} sc1 lds')

    def load_w():
        for ee in range(4):
            A(f's_add_u32 s31, s34, {ee * 4096}')
            for rp in range(4):
                d = WR + (ee * 4 + rp) * 4
                A(f'buffer_load_dwordx4 v[{d}:{d + 3}], v{tmp}, s[{SRD_T}:{SRD_T + 3}], s31 offen offset:{rp * 1024} sc1')
        A(f's_mov_b32 s31, {OFF_WC}')
        for z in range(2):
            A(f'buffer_load_dwordx2 v[{SW + 4 * z}:{SW + 4 * z + 1}], v{tmp + 2 + z}, s[{SRD_T}:{SRD_T + 3}], s31 offen sc1')
    if pre:
        pre(A, WR, FR[0])
    wl = []

    c0, c1, c2, c3 = AC, AC + 1, AC + 2, AC + 3
    fi, fg = AC + 4, AC + 5
    A(f'v_cvt_f32_u32 v{fi}, v{vi}')
    A(f'v_cvt_f32_u32 v{fg}, v{vg}')
    cnt = [0]

    def quad(angf, dst):
        o = 10 + 4 * (cnt[0] & 3)
        cnt[0] += 1
        C, S_, T = AC + o, AC + o + 1, AC + o + 2
        angf(T)
        A(f'v_cos_f32 v{C}, v{T}')
        A(f'v_sin_f32 v{S_}, v{T}')
        if wl:
            for l in wl.pop(0):
                A(l)
        pend.append((C, S_, T, dst))
        if len(pend) > 1:
            fin(pend.pop(0))
    pend = []

    def fin(p):
        C, S_, T, dst = p
        m = {'c': f'v{C}', 's': f'v{S_}', 'n': f'-v{S_}'}
        k = 0
        for (lo, hi, kind, reg) in dst:
            if kind == 'v':
                A(f'v_cvt_pk_bf16_f32 v{reg}, {m[lo]}, {m[hi]}')
            else:
                A(f'v_cvt_pk_bf16_f32 v{T + k}, {m[lo]}, {m[hi]}')
                k += 1
        k = 0
        for (lo, hi, kind, reg) in dst:
            if kind == 'a':
                A(f'v_accvgpr_write_b32 a{reg}, v{T + k}')
                k += 1
    f16, base = AC + 6, AC + 7
    A(f'v_mul_f32 v{f16}, {fl(1 / 16)}, v{fi}')
    A(f'v_add_f32 v{base}, v{fg}, v{fg}')
    A(f'v_mul_f32 v{base}, v{base}, v{f16}')
    for q in range(4):
        quad(lambda T: A(f'v_fmamk_f32 v{T}, v{f16}, {fl(8 * (q >> 1) + (q & 1))}, v{base}'),
             [('c', 's', 'v', B1R + q), ('n', 'c', 'v', B1I + q), ('c', 'n', 'v', B4R + q), ('s', 'c', 'v', B4I + q)])
    ef, g2 = AC + 8, AC + 9
    A(f's_lshl_b32 s28, s{S_OM}, 2')
    A(f'v_lshl_add_u32 v{ef}, v{vi}, 4, s28')
    A(f'v_cvt_f32_u32 v{ef}, v{ef}')
    A(f'v_mul_f32 v{ef}, {fl(1 / 256)}, v{ef}')
    A(f'v_add_f32 v{g2}, v{fg}, v{fg}')
    for ee in range(4):
        if ee:
            A(f'v_add_f32 v{ef}, {fl(1 / 256)}, v{ef}')
        A(f'v_mul_f32 v{base}, v{g2}, v{ef}')
        for q in range(4):
            quad(lambda T: A(f'v_fmamk_f32 v{T}, v{ef}, {fl(8 * (q >> 1) + (q & 1))}, v{base}'),
                 [('c', 's', 'a', A2 + ee * 8 + q), ('n', 'c', 'a', A2 + ee * 8 + 4 + q)])
    A(f'v_lshl_add_u32 v{base}, v{vg}, 6, s28')
    A(f'v_cvt_f32_u32 v{base}, v{base}')
    A(f'v_mul_f32 v{ef}, {fl(1 / 256)}, v{fi}')
    A(f'v_mul_f32 v{base}, v{base}, v{ef}')
    for ee in range(4):
        for rp in range(4):
            quad(lambda T: A(f'v_fmamk_f32 v{T}, v{ef}, {fl(ee + 16 * rp)}, v{base}'),
                 [('c', 'n', 'a', B3 + ee * 8 + rp), ('s', 'c', 'a', B3 + ee * 8 + 4 + rp)])
    fin(pend.pop(0))
    assert not wl
    A(f's_lshl_b32 s28, s{S_OM}, 6')
    A(f'v_add_u32 v{vk}, s28, v0')
    A(f'v_lshl_add_u32 v{tmp + 2}, v{vk}, 3, s{S_K1A}')
    A(f'v_sub_u32 v{tmp + 3}, 2048, v{tmp + 2}')
    A(f'v_bfe_u32 v{vkp}, v{tmp + 3}, 3, 8')
    A(f'v_and_b32 v{tmp + 3}, 7, v{tmp + 3}')
    A(f'v_lshlrev_b32 v{tmp + 3}, 11, v{tmp + 3}')
    A(f'v_lshl_add_u32 v{tmp + 3}, v{vkp}, 3, v{tmp + 3}')
    A(f's_lshl_b32 s28, s{S_K1A}, 11')
    A(f'v_lshl_add_u32 v{tmp + 2}, v{vk}, 3, s28')
    A(f's_lshr_b32 s28, s{S_W}, 2')
    A(f's_xor_b32 s31, s28, 1')
    A(f's_cmp_eq_u32 s{S_CL}, 0')
    A(f's_cselect_b32 s31, s28, s31')
    A(f's_lshl_b32 s28, s28, 11')
    A(f's_lshl_b32 s31, s31, 11')
    A(f's_add_u32 s28, s28, {XS_OFF}')
    A(f's_add_u32 s31, s31, {XS_OFF}')
    A(f'v_lshl_add_u32 v{vk}, v{vk}, 3, s28')
    A(f'v_lshl_add_u32 v{vkp}, v{vkp}, 3, s31')
    A(f's_mov_b32 s13, s28')
    A(f'v_bfe_u32 v{tmp + 4}, v0, 3, 1')
    A(f'v_lshl_add_u32 v{tmp + 4}, v{vg}, 1, v{tmp + 4}')
    A(f'v_and_b32 v{tmp + 5}, 7, v0')
    A(f'v_lshlrev_b32 v{tmp + 5}, 3, v{tmp + 5}')
    A(f'v_and_b32 v{tmp + 6}, 3, v{tmp + 4}')
    A(f'v_lshl_add_u32 v{tmp + 6}, v{tmp + 6}, 6, v{tmp + 5}')
    A(f'v_lshl_add_u32 v{tmp + 6}, v{tmp + 4}, 8, v{tmp + 6}')
    A(f'v_add_u32 v{tmp + 6}, s30, v{tmp + 6}')
    A(f'v_lshrrev_b32 v{tmp + 8}, 1, v{vi}')
    A(f'v_xor_b32 v{tmp + 8}, v{tmp + 8}, v{vg}')
    A(f'v_lshlrev_b32 v{tmp + 8}, 3, v{tmp + 8}')
    A(f'v_and_b32 v{tmp + 7}, 3, v{vi}')
    A(f'v_lshl_add_u32 v{tmp + 7}, v{tmp + 7}, 6, v{tmp + 8}')
    A(f'v_lshl_add_u32 v{tmp + 7}, v{vi}, 8, v{tmp + 7}')
    A(f'v_add_u32 v{tmp + 7}, s30, v{tmp + 7}')
    for r in range(4):
        A(f'v_xor_b32 v{vRd + r}, {r << 6}, v{tmp + 6}')
        for ro in range(2):
            A(f'v_xor_b32 v{vP + 2 * r + ro}, {(r << 6) | (ro << 5)}, v{tmp + 7}')
    A(f's_lshl_b32 s28, s{S_OM}, 10')
    A(f's_add_u32 s28, s28, s{S_GB}')
    A(f's_lshl_b32 s35, s{S_OM}, 4')
    A(f'v_mul_u32_u24 v{vR2}, {VROW}, v{tmp + 4}')
    A(f'v_add3_u32 v{vR2}, v{vR2}, v{tmp + 5}, s28')
    A(f'v_xor_b32 v{vR2}, s35, v{vR2}')
    A(f'v_xor_b32 v{vR2 + 1}, 8, v{vR2}')
    A(f'v_mul_u32_u24 v{vW2}, {VROW}, v{vi}')
    A(f'v_add3_u32 v{vW2}, v{vW2}, v{tmp + 8}, s28')
    A(f'v_xor_b32 v{vW2 + 1}, 32, v{vW2}')
    A(f'v_lshlrev_b32 v{vT2}, 20, v{vg}')
    A(f'v_lshl_add_u32 v{vT2}, v{vi}, 4, v{vT2}')
    A(f's_lshl_b32 s32, s{S_OM}, 16')
    A(f's_lshl_b32 s33, s{S_K1A}, 11')
    A(f's_add_u32 s32, s32, s33')
    A(f's_lshl_b32 s33, s{S_Q}, 8')
    A(f's_add_u32 s32, s32, s33')
    A(f's_add_u32 s32, s32, {OFF_T2}')
    A(f's_mov_b32 s36, 0xffff0000')
    ST.take(A, 1, 'mid')
    wait_t(A, WR, FR[0], load_w, load_t)
    ST.take(A, 3, 'mid')

    def rd1(r):
        for vv in range(4):
            for t in range(2):
                d = FR[r & 1] + 4 * vv + 2 * t
                A(f'ds_read_b64_tr_b16 v[{d}:{d + 1}], v{vRd + r} offset:{vv * VROW + t * 2048}')
    rd1(0)
    for r in range(4):
        if r < 3:
            rd1(r + 1)
        nw = 8 if r > 0 else 0
        for vv in range(4):
            f = FR[r & 1] + 4 * vv
            A(f's_waitcnt lgkmcnt({min(15, (8 if r < 3 else 0) + nw + 6 - 2 * vv)})')
            A(f'v_mfma_f32_16x16x32_bf16 v[{AC + 8 * vv}:{AC + 8 * vv + 3}], v[{f}:{f + 3}], v[{B1R}:{B1R + 3}], 0')
            A(f'v_mfma_f32_16x16x32_bf16 v[{AC + 8 * vv + 4}:{AC + 8 * vv + 7}], v[{f}:{f + 3}], v[{B1I}:{B1I + 3}], 0')
        for vv in range(4):
            a = AC + 8 * vv
            p = tmp + 4 * vv
            for q in range(4):
                A(f'v_cvt_pk_bf16_f32 v{p + q}, v{a + 2 * q}, v{a + 2 * q + 1}')
            for ro in range(2):
                A(f'ds_write_b64 v{vP + 2 * r + ro}, v[{p + 2 * ro}:{p + 2 * ro + 1}] offset:{vv * VROW}')
    for r in range(4):
        A(f'v_xor_b32 v{vP + 2 * r}, s35, v{vRd + r}')
        A(f'v_xor_b32 v{vP + 2 * r + 1}, 8, v{vP + 2 * r}')
    A('s_waitcnt vmcnt(0) lgkmcnt(0)')
    A('s_barrier')
    ST.take(A, 4, 'mid')

    def rd2(r):
        for ee in range(4):
            for t in range(2):
                d = FR[r & 1] + 4 * ee + 2 * t
                A(f'ds_read_b64_tr_b16 v[{d}:{d + 1}], v{vR2 + (ee >> 1)} offset:{t * 8 * VROW + ee * 256 + ((r ^ ee) & 3) * 64}')
    rd2(0)
    for r in range(4):
        if r < 3:
            rd2(r + 1)
        nw = 8 if r > 0 else 0
        for ee in range(4):
            f = FR[r & 1] + 4 * ee
            A(f's_waitcnt lgkmcnt({min(15, (8 if r < 3 else 0) + nw + 6 - 2 * ee)})')
            A(f'v_mfma_f32_16x16x32_bf16 v[{AC + 8 * ee}:{AC + 8 * ee + 3}], a[{A2 + 8 * ee}:{A2 + 8 * ee + 3}], v[{f}:{f + 3}], 0')
            A(f'v_mfma_f32_16x16x32_bf16 v[{AC + 8 * ee + 4}:{AC + 8 * ee + 7}], a[{A2 + 8 * ee + 4}:{A2 + 8 * ee + 7}], v[{f}:{f + 3}], 0')
        if r == 0:
            LS1 = A.newlabel('mid_nocol0a')
            A(f's_cmp_lg_u32 s{S_Q}, 0')
            A(f's_cbranch_scc1 {LS1}')
            A(f's_lshl_b32 s28, s{S_OM}, 5')
            A(f's_add_u32 s28, s28, s13')
            A(f'v_lshl_add_u32 v{tmp}, v{vg}, 9, s28')
            A('s_mov_b32 exec_lo, 0x00010001')
            A('s_mov_b32 exec_hi, 0x00010001')
            for ee in range(4):
                for rp in range(4):
                    o = ee * 2 + rp * 32
                    A(f'ds_write2_b32 v{tmp}, v{AC + 8 * ee + rp}, v{AC + 8 * ee + 4 + rp} offset0:{o} offset1:{o + 1}')
            A('s_mov_b64 exec, -1')
            A('s_waitcnt lgkmcnt(0)')
            A('s_barrier')
            xo, xp = tmp + 2, tmp + 4
            A(f'ds_read_b64 v[{xo}:{xo + 1}], v{vk}')
            A(f'ds_read_b64 v[{xp}:{xp + 1}], v{vkp}')
            for z in range(2):
                b_ = SW + 4 * z
                A(f'v_and_b32 v{b_ + 3}, s36, v{b_ + 1}')
                A(f'v_lshlrev_b32 v{b_ + 2}, 16, v{b_ + 1}')
                A(f'v_and_b32 v{b_ + 1}, s36, v{b_}')
                A(f'v_lshlrev_b32 v{b_}, 16, v{b_}')
            A(f'v_add_f32 v{SW}, v{SW}, v{SW + 4}')
            A(f'v_sub_f32 v{SW + 1}, v{SW + 1}, v{SW + 5}')
            A(f'v_add_f32 v{SW + 2}, v{SW + 2}, v{SW + 6}')
            A(f'v_sub_f32 v{SW + 3}, v{SW + 3}, v{SW + 7}')
            A(f'v_add_f32 v{SW + 4}, v{SW}, v{SW + 2}')
            A(f'v_add_f32 v{SW + 5}, v{SW + 1}, v{SW + 3}')
            A(f'v_sub_f32 v{SW + 6}, v{SW}, v{SW + 2}')
            A(f'v_sub_f32 v{SW + 7}, v{SW + 1}, v{SW + 3}')
            A('s_waitcnt lgkmcnt(0)')
            y = tmp + 6
            A(f'v_mul_f32 v{y}, v{xo}, v{SW + 4}')
            A(f'v_mul_f32 v{y + 1}, v{xo}, v{SW + 5}')
            A(f'v_fma_f32 v{y}, -v{xo + 1}, v{SW + 5}, v{y}')
            A(f'v_fma_f32 v{y + 1}, v{xo + 1}, v{SW + 4}, v{y + 1}')
            A(f'v_fma_f32 v{y}, v{xp}, v{SW + 6}, v{y}')
            A(f'v_fma_f32 v{y + 1}, v{xp}, v{SW + 7}, v{y + 1}')
            A(f'v_fma_f32 v{y}, v{xp + 1}, v{SW + 7}, v{y}')
            A(f'v_fma_f32 v{y + 1}, -v{xp + 1}, v{SW + 6}, v{y + 1}')
            A(f'v_mul_f32 v{y}, {fl(0.125)}, v{y}')
            A(f'v_mul_f32 v{y + 1}, {fl(0.125)}, v{y + 1}')
            A(f'v_cvt_pk_bf16_f32 v{y}, v{y}, v{y + 1}')
            A(f'ds_write_b32 v{vk}, v{y} offset:{YS_OFF - XS_OFF}')
            A(f'v_mov_b32 v{vk}, v{tmp}')
            A('s_waitcnt lgkmcnt(0)')
            A('s_barrier')
            A.label(LS1)
        for ee in range(4):
            a = AC + 8 * ee
            w = tmp + 8 * (ee & 1)
            for rp in range(4):
                src = (ee * 4 + rp) * 4 + (r >> 1)
                for (W_, o) in ((WR, 0), (WR + 2, 4)):
                    if r & 1:
                        A(f'v_and_b32 v{w + o + rp}, s36, v{W_ + src}')
                    else:
                        A(f'v_lshlrev_b32 v{w + o + rp}, 16, v{W_ + src}')
            f = FR[r & 1] + 4 * ee
            for h in range(2):
                xr, xi = f'v[{a + 2 * h}:{a + 2 * h + 1}]', f'v[{a + 4 + 2 * h}:{a + 5 + 2 * h}]'
                wr, wi = f'v[{w + 2 * h}:{w + 2 * h + 1}]', f'v[{w + 4 + 2 * h}:{w + 5 + 2 * h}]'
                t0 = f'v[{f + 2 * h}:{f + 2 * h + 1}]'
                A(f'v_pk_mul_f32 {t0}, {xr}, {wr}')
                A(f'v_pk_mul_f32 {xr}, {xr}, {wi}')
                A(f'v_pk_fma_f32 {t0}, {xi}, {wi}, {t0} neg_lo:[1,0,0] neg_hi:[1,0,0]')
                A(f'v_pk_fma_f32 {xr}, {xi}, {wr}, {xr}')
            for rp in range(4):
                A(f'v_cvt_pk_bf16_f32 v{f + rp}, v{f + rp}, v{a + rp}')
        if r == 0:
            LS2 = A.newlabel('mid_nocol0b')
            A(f's_cmp_lg_u32 s{S_Q}, 0')
            A(f's_cbranch_scc1 {LS2}')
            A('s_mov_b32 exec_lo, 0x00010001')
            A('s_mov_b32 exec_hi, 0x00010001')
            for ee in range(4):
                for rp in range(4):
                    A(f'ds_read_b32 v{FR[0] + 4 * ee + rp}, v{vk} offset:{YS_OFF - XS_OFF + ee * 8 + rp * 128}')
            A('s_waitcnt lgkmcnt(0)')
            A('s_mov_b64 exec, -1')
            A.label(LS2)
        for ee in range(4):
            f = FR[r & 1] + 4 * ee
            A(f'v_mfma_f32_16x16x32_bf16 v[{AC + 8 * ee}:{AC + 8 * ee + 3}], v[{f}:{f + 3}], a[{B3 + 8 * ee}:{B3 + 8 * ee + 3}], 0')
            A(f'v_mfma_f32_16x16x32_bf16 v[{AC + 8 * ee + 4}:{AC + 8 * ee + 7}], v[{f}:{f + 3}], a[{B3 + 8 * ee + 4}:{B3 + 8 * ee + 7}], 0')
        for ee in range(4):
            a = AC + 8 * ee
            p = tmp + 4 * ee
            for q in range(4):
                A(f'v_cvt_pk_bf16_f32 v{p + q}, v{a + 2 * q}, v{a + 2 * q + 1}')
            o = ee * 256 + ((r ^ ee) & 3) * 64
            for ro in range(2):
                A(f'ds_write_b64 v{vW2 + ro}, v[{p + 2 * ro}:{p + 2 * ro + 1}] offset:{o}')
    A('s_waitcnt lgkmcnt(0)')
    A('s_barrier')
    ST.take(A, 5, 'mid')

    def rd3(vv):
        for r in range(4):
            for t in range(2):
                d = FR[vv & 1] + 4 * r + 2 * t
                A(f'ds_read_b64_tr_b16 v[{d}:{d + 1}], v{vP + 2 * r + (vv >> 1)} offset:{vv * VROW + t * 2048}')
    rd3(0)
    for vv in range(4):
        if vv < 3:
            rd3(vv + 1)
        for r in range(4):
            f = FR[vv & 1] + 4 * r
            A(f's_waitcnt lgkmcnt({(8 if vv < 3 else 0) + 6 - 2 * r})')
            A(f'v_mfma_f32_16x16x32_bf16 v[{AC + 8 * r}:{AC + 8 * r + 3}], v[{B4R}:{B4R + 3}], v[{f}:{f + 3}], 0')
            A(f'v_mfma_f32_16x16x32_bf16 v[{AC + 8 * r + 4}:{AC + 8 * r + 7}], v[{B4I}:{B4I + 3}], v[{f}:{f + 3}], 0')
        p = WR + 16 * vv
        for q in range(4):
            for r in range(4):
                A(f'v_cvt_pk_bf16_f32 v{p + 4 * q + r}, v{AC + 8 * r + q}, v{AC + 8 * r + 4 + q}')
            A(f's_add_u32 s33, s32, {vv * 16384 + q * 16 * 16384}')
            A(f'buffer_store_dwordx4 v[{p + 4 * q}:{p + 4 * q + 3}], v{vT2}, s[{SRD_T}:{SRD_T + 3}], s33 offen {t2s}')


RROW = 1024


def ifft_consts(A, S_S2, RG, LB, LT):
    M8, BC, BS, BN, TR, TI, CC, CN, vSg, vWr, vRd, vIm, vSo, tmp = (RG[k] for k in (
        'M8', 'BC', 'BS', 'BN', 'TR', 'TI', 'CC', 'CN', 'vSg', 'vWr', 'vRd', 'vIm', 'vSo', 'tmp'))
    vh, vc, vf, vb = tmp + 6, tmp + 7, tmp + 8, tmp + 9
    A(f'v_bfe_u32 v{vf}, v0, 1, 3')
    A(f'v_lshlrev_b32 v{vf}, 8, v{vf}')
    A(f'v_add_u32 v{vf}, s{S_S2}, v{vf}')
    A(f'v_cvt_f32_u32 v{vf}, v{vf}')
    A(f'v_mul_f32 v{vf}, {fl(1 / 2048)}, v{vf}')
    A(f'v_lshrrev_b32 v{vh}, 4, v0')
    A(f'v_lshlrev_b32 v{vh}, 1, v{vh}')
    A(f'v_cvt_f32_u32 v{vh}, v{vh}')
    A(f'v_and_b32 v{vc}, 1, v0')
    A(f'v_cvt_f32_u32 v{vc}, v{vc}')
    A(f'v_mul_f32 v{vb}, v{vh}, v{vf}')
    A(f'v_fmac_f32 v{vb}, {fl(-0.25)}, v{vc}')
    A(f'v_add_f32 v{vh}, v{vb}, v{vf}')
    A(f'v_cos_f32 v{tmp}, v{vb}')
    A(f'v_sin_f32 v{tmp + 1}, -v{vb}')
    A(f'v_cos_f32 v{tmp + 2}, v{vh}')
    A(f'v_sin_f32 v{tmp + 3}, -v{vh}')
    A(f'v_fma_f32 v{vSg}, v{vc}, -2.0, 1.0')
    A(f'v_cmp_gt_u32 vcc, 32, v0')
    for i in range(4):
        A(f'v_mul_f32 v{tmp + i}, {fl(2.0 ** -20)}, v{tmp + i}')
    A(f'v_cndmask_b32 v{vSg}, 0, v{vSg}, vcc')
    A(f'v_cvt_pk_bf16_f32 v{M8}, v{tmp}, v{tmp + 1}')
    A(f'v_cvt_pk_bf16_f32 v{M8 + 1}, v{tmp + 2}, v{tmp + 3}')
    A(f'v_and_b32 v{vb}, 0x13, v0')
    A(f'v_bfe_u32 v{vf}, v0, 2, 1')
    A(f'v_lshl_or_b32 v{vb}, v{vf}, 3, v{vb}')
    A(f'v_bfe_u32 v{vf}, v0, 3, 1')
    A(f'v_lshl_or_b32 v{vb}, v{vf}, 2, v{vb}')
    A(f'v_cvt_f32_u32 v{vf}, v{vb}')
    A(f'v_mul_f32 v{vf}, {fl(1 / 32)}, v{vf}')
    A(f'v_lshrrev_b32 v{vh}, 5, v0')
    A(f'v_cvt_f32_u32 v{vh}, v{vh}')
    A(f'v_mul_f32 v{vb}, {fl(8.0)}, v{vh}')
    A(f'v_mul_f32 v{vb}, v{vb}, v{vf}')
    for p in range(4):
        A(f'v_fmamk_f32 v{tmp}, v{vf}, {fl(2 * p)}, v{vb}')
        A(f'v_fmamk_f32 v{tmp + 1}, v{vf}, {fl(2 * p + 1)}, v{vb}')
        A(f'v_cos_f32 v{tmp + 2}, v{tmp}')
        A(f'v_cos_f32 v{tmp + 3}, v{tmp + 1}')
        A(f'v_sin_f32 v{tmp + 4}, v{tmp}')
        A(f'v_sin_f32 v{tmp + 5}, v{tmp + 1}')
        A(f'v_cvt_pk_bf16_f32 v{BC + p}, v{tmp + 2}, v{tmp + 3}')
        A(f'v_cvt_pk_bf16_f32 v{BS + p}, v{tmp + 4}, v{tmp + 5}')
        A(f'v_cvt_pk_bf16_f32 v{BN + p}, -v{tmp + 4}, -v{tmp + 5}')
    A(f'v_mul_f32 v{vf}, {fl(1 / 32)}, v{vf}')
    A(f'v_mul_f32 v{vb}, {fl(4.0)}, v{vh}')
    A(f'v_mul_f32 v{vb}, v{vb}, v{vf}')
    for i in range(16):
        t = tmp + (i & 1)
        A(f'v_fmamk_f32 v{t}, v{vf}, {fl(8 * (i >> 2) + (i & 3))}, v{vb}')
        A(f'v_cos_f32 v{TR + i}, v{t}')
        A(f'v_sin_f32 v{TI + i}, v{t}')
    A(f'v_and_b32 v{vf}, 31, v0')
    A(f'v_cvt_f32_u32 v{vf}, v{vf}')
    A(f'v_mul_f32 v{vf}, {fl(1 / 32)}, v{vf}')
    A(f'v_mul_f32 v{vb}, {fl(4.0)}, v{vh}')
    A(f'v_mul_f32 v{vb}, v{vb}, v{vf}')
    trig_pairs(A, CC, CN, lambda i, r: A(f'v_fmamk_f32 v{r}, v{vf}, {fl(16 * (i >> 3) + 8 * ((i >> 2) & 1) + (i & 3))}, v{vb}'), 16, tmp, True)
    vLd = RG['vLd']
    A(f'v_and_b32 v{tmp}, 15, v0')
    A(f'v_lshrrev_b32 v{tmp + 2}, 4, v0')
    A(f'v_lshlrev_b32 v{tmp + 1}, 3, v{tmp + 2}')
    A(f'v_and_b32 v{tmp + 3}, 7, v0')
    A(f'v_lshlrev_b32 v{tmp + 3}, 4, v{tmp + 3}')
    A(f'v_xor_b32 v{tmp + 1}, v{tmp + 1}, v{tmp + 3}')
    A(f'v_lshl_add_u32 v{tmp + 1}, v{tmp}, 10, v{tmp + 1}')
    A(f's_lshl_b32 s28, s{S_W}, 8')
    A(f's_add_u32 s28, s28, {LB}')
    A(f'v_add_u32 v{vWr}, s28, v{tmp + 1}')
    for t in range(1, 4):
        A(f'v_xor_b32 v{vWr + t}, {t * 32}, v{vWr}')
    A(f'v_lshrrev_b32 v{tmp + 1}, 1, v{tmp}')
    A(f's_lshl_b32 s28, s{S_W}, 1')
    A(f'v_xor_b32 v{tmp + 1}, s28, v{tmp + 1}')
    A(f'v_lshlrev_b32 v{tmp + 1}, 4, v{tmp + 1}')
    A(f'v_lshl_add_u32 v{tmp + 1}, v{tmp}, 7, v{tmp + 1}')
    A(f'v_lshl_add_u32 v{tmp + 1}, v{tmp + 2}, 12, v{tmp + 1}')
    A(f'v_add_u32 v{vLd}, {LT}, v{tmp + 1}')
    A(f'v_xor_b32 v{vLd + 1}, 16, v{vLd}')
    A(f's_lshl_b32 s28, s{S_W}, 11')
    A(f's_add_u32 s28, s28, {LB}')
    A(f's_lshl_b32 s29, s{S_W}, 5')
    A(f'v_and_b32 v{tmp}, 31, v0')
    A(f'v_lshlrev_b32 v{tmp}, 5, v{tmp}')
    A(f'v_lshrrev_b32 v{tmp + 1}, 5, v0')
    A(f'v_lshl_add_u32 v{tmp}, v{tmp + 1}, 4, v{tmp}')
    A(f'v_xor_b32 v{tmp}, s29, v{tmp}')
    A(f'v_add_u32 v{vRd}, s28, v{tmp}')
    A(f'v_xor_b32 v{vRd + 1}, 16, v{vRd}')
    A(f's_add_u32 s28, s28, s29')
    A(f's_add_u32 s28, s28, 16')
    A(f'v_mov_b32 v{vIm}, s28')
    A(f'v_and_b32 v{tmp}, 15, v0')
    A(f'v_lshlrev_b32 v{vSo}, 6, v{tmp}')
    A(f'v_bfe_u32 v{tmp}, v0, 4, 1')
    A(f'v_lshl_add_u32 v{vSo}, v{tmp}, 5, v{vSo}')
    A(f'v_lshrrev_b32 v{tmp}, 5, v0')
    A(f'v_lshl_add_u32 v{vSo}, v{tmp}, 4, v{vSo}')


def ifft_regs(start):
    R = Alloc(start, 256)
    RG = dict(M8=R(2, 2), BC=R(4, 4), BS=R(4, 4), BN=R(4, 4), TR=R(16, 2), TI=R(16, 2), CC=R(8, 4), CN=R(8, 4),
              vSg=R(), vWr=R(4), vRd=R(2), vIm=R(), vSo=R(), vLd=R(2), tmp=R(12, 4), L=R(16, 4),
              ZR=[R(16, 4), R(16, 4)], ZI=[R(16, 4), R(16, 4)], IM=R(2, 2))
    RG['end'] = R.n
    return RG


def ifft_compute(A, S_S2, RG, mid_hook=None):
    M8, BC, BS, BN, TR, TI, CC, CN, vSg, vWr, vRd, vIm, vSo, tmp, L, ZR, ZI, IM = (RG[k] for k in (
        'M8', 'BC', 'BS', 'BN', 'TR', 'TI', 'CC', 'CN', 'vSg', 'vWr', 'vRd', 'vIm', 'vSo', 'tmp', 'L', 'ZR', 'ZI', 'IM'))
    SRD, sflag, vLd = SRD_WS, 'sc1', RG['vLd']
    for p in range(2):
        for x in range(2):
            d = L + 8 * p + 4 * x
            A(f'ds_read_b128 v[{d}:{d + 3}], v{vLd + p} offset:{x * 2048}')
    A(f'v_mov_b32 v{IM}, 0')
    A(f'v_mov_b32 v{IM + 1}, 0')
    for p in range(2):
        A(f's_waitcnt lgkmcnt({2 - 2 * p})')
        for t in range(4):
            a = ZI[p] + 2 * t
            s0 = L + 8 * p + (t & 2)
            A(f'v_pk_mov_b32 v[{a}:{a + 1}], v[{s0}:{s0 + 1}], v[{s0 + 4}:{s0 + 5}] op_sel:[{t & 1},{t & 1}]')
        for t in range(4):
            a = ZI[p] + 2 * t
            A(f'v_mfma_f32_16x16x16_bf16 v[{ZR[p] + 4 * t}:{ZR[p] + 4 * t + 3}], v[{a}:{a + 1}], v[{M8}:{M8 + 1}], 0')
    for p in range(2):
        for t in range(4):
            a = ZI[p] + 8 + 2 * t
            A(f'v_cvt_pk_bf16_f32 v{a}, v{ZR[p] + 4 * t}, v{ZR[p] + 4 * t + 1}')
            A(f'v_cvt_pk_bf16_f32 v{a + 1}, v{ZR[p] + 4 * t + 2}, v{ZR[p] + 4 * t + 3}')
            A(f'ds_write_b64 v{vWr + t}, v[{a}:{a + 1}] offset:{p * 128}')
    A(f's_lshl_b32 s28, s{S_S2}, 3')
    A(f's_add_u32 s28, s28, s{S_W}')
    A(f's_lshl_b32 s28, s28, 11')
    A(f's_add_u32 s28, s28, {OFF_S}')
    A(f's_add_u32 s29, s28, {4 * 2048}')
    A('s_waitcnt lgkmcnt(0)')
    A('s_barrier')
    if mid_hook:
        mid_hook(A)
    for z in range(2):
        for ro in range(2):
            d = L + 8 * z + 4 * ro
            A(f'ds_read_b128 v[{d}:{d + 3}], v{vRd + ro} offset:{(8 * z + ro) * RROW}')
        A(f'ds_read_u16_d16_hi v{IM + z}, v{vIm} offset:{(8 * z + 1) * RROW}')
    for z in range(2):
        A(f's_waitcnt lgkmcnt({4 - 3 * z})')
        re, im = L + 8 * z, L + 8 * z + 4
        for (Z, c0, c1) in ((ZR[z], BC, BN), (ZI[z], BS, BC)):
            A(f'v_mfma_f32_32x32x16_bf16 v[{Z}:{Z + 15}], v[{re}:{re + 3}], v[{c0}:{c0 + 3}], 0')
        for (Z, c0, c1) in ((ZR[z], BC, BN), (ZI[z], BS, BC)):
            A(f'v_mfma_f32_32x32x16_bf16 v[{Z}:{Z + 15}], v[{im}:{im + 3}], v[{c1}:{c1 + 3}], v[{Z}:{Z + 15}]')
    A('s_waitcnt lgkmcnt(0)')
    for z in range(2):
        Yr, Yi = ZR[z], ZI[z]
        PR, PI = L, L + 8
        A(f'v_fmac_f32 v{Yr}, v{IM + z}, v{vSg}')
        for q in range(8):
            yr, yi, tr, ti = (f'v[{x + 2 * q}:{x + 2 * q + 1}]' for x in (Yr, Yi, TR, TI))
            a0 = tmp + 2 * (q & 1)
            t0 = f'v[{a0}:{a0 + 1}]'
            A(f'v_pk_mul_f32 {t0}, {yr}, {tr}')
            A(f'v_pk_mul_f32 {yr}, {yr}, {ti}')
            A(f'v_pk_fma_f32 {t0}, {yi}, {ti}, {t0} neg_lo:[1,0,0] neg_hi:[1,0,0]')
            A(f'v_pk_fma_f32 {yr}, {yi}, {tr}, {yr}')
            A(f'v_cvt_pk_bf16_f32 v{PR + q}, v{a0}, v{a0 + 1}')
            A(f'v_cvt_pk_bf16_f32 v{PI + q}, v{Yr + 2 * q}, v{Yr + 2 * q + 1}')
        seq = [(PR, CC, 0), (PI, CN, 0), (PR, CC, 1), (PI, CN, 1)]
        for n, (d, c, kk) in enumerate(seq):
            A(f'v_mfma_f32_32x32x16_bf16 v[{Yi}:{Yi + 15}], v[{d + 4 * kk}:{d + 4 * kk + 3}], v[{c + 4 * kk}:{c + 4 * kk + 3}], ' + ('0' if n == 0 else f'v[{Yi}:{Yi + 15}]'))
    for z in range(2):
        Yr, Yi = ZR[z], ZI[z]
        for q in range(8):
            A(f'v_cvt_pk_bf16_f32 v{Yr + q}, v{Yi + 2 * q}, v{Yi + 2 * q + 1}')
        for q in range(4):
            A(f'v_permlane16_swap_b32 v{Yr + q}, v{Yr + 4 + q}')
        for hh in range(2):
            A(f'buffer_store_dwordx4 v[{Yr + 4 * hh}:{Yr + 4 * hh + 3}], v{vSo}, s[{SRD}:{SRD + 3}], s{28 + z} offen offset:{hh * 1024} {sflag}')
```

```python
from asmlib import *
from gemm import make_srd
from model import OFF_T, OFF_T2, OFF_S, OFF_H, OFF_SY, OFF_ST, OFF_CS, OFF_EX
import fft2
from fft2 import P_X, P_WR, P_WI, P_W1, P_B1, P_W2, P_B2, P_OUT, P_DBG, P_WS, SRD_WS, S_W, fl

K = 1024
WS = f's[{SRD_WS}:{SRD_WS + 3}]'
L_P1, L_W, L_H, L_T2, L_S, L_CS, L_EX, L_N = 0, 16, 32, 64, 80, 96, 128, 384
G1A, G1B = 0, 48 * K
P1_LB = 112 * K
AUXW = 148 * K
AUXX = AUXW + 2048
AUXZ = AUXX + 1024
G2A, G2B = 0, 80 * K
XCH, T2IN = 64 * K, 144 * K
SPIN = 1 << 14
S_TM, S_I, S_KH, S_TN2, S_OWN, S_MID = 3, 4, 44, 45, 46, 47


class VQ:
    def __init__(self, A):
        self.A = A
        self.q = []

    def __call__(self, text, tag=None):
        self.A(text)
        self.q.append(tag)

    def wait(self, tag):
        if tag not in self.q:
            return
        last = max(i for i, t in enumerate(self.q) if t == tag)
        n = len(self.q) - 1 - last
        self.A(f's_waitcnt vmcnt({min(n, 63)})')
        if n <= 63:
            self.q = self.q[last + 1:]

    def drain(self):
        self.A('s_waitcnt vmcnt(0)')
        self.q = []

    def copy(self):
        o = VQ(self.A)
        o.q = list(self.q)
        return o


def spin(A, vaddr, vdst, soff, target, nl=1, first_done=False, sc=40):
    L0, L1 = A.newlabel('spin'), A.newlabel('spun')
    A(f's_mov_b32 s{sc}, 0')
    if first_done:
        LC = A.newlabel('spinc')
        A(f's_branch {LC}')
    A.label(L0)
    A(f'buffer_load_dword v{vdst}, v{vaddr}, {WS}, {soff} offen sc1')
    A('s_waitcnt vmcnt(0)')
    if first_done:
        A.label(LC)
    A(f'v_cmp_gt_u32 vcc, {target}, v{vdst}')
    A(f's_and_b32 s{sc + 1}, vcc_lo, {(1 << nl) - 1:#x}')
    A(f's_cbranch_scc0 {L1}')
    A(f's_add_u32 s{sc}, s{sc}, 1')
    A(f's_cmp_lt_u32 s{sc}, {SPIN}')
    A(f's_cbranch_scc1 {L0}')
    A.label(L1)


def boot_check(A, v0, v1, issue=True, check=True, Q=None):
    if issue:
        A(f'v_mov_b32 v{v0}, 0')
        (Q or A)(f'global_load_dword v{v1}, v{v0}, s[{P_DBG}:{P_DBG + 1}] sc1', *(['boot'] if Q else []))
    if check:
        L0, L1 = A.newlabel('boot'), A.newlabel('booted')
        A('s_mov_b32 s40, 0')
        if Q:
            Q.wait('boot')
        else:
            A('s_waitcnt vmcnt(0)')
        A.label(L0)
        A(f'v_readfirstlane_b32 s41, v{v1}')
        A('s_cmp_lg_u32 s41, 0')
        A(f's_cbranch_scc1 {L1}')
        A(f'global_load_dword v{v1}, v{v0}, s[{P_DBG}:{P_DBG + 1}] sc1')
        A('s_add_u32 s40, s40, 1')
        A(f's_cmp_lt_u32 s40, {SPIN}')
        A('s_waitcnt vmcnt(0)')
        A(f's_cbranch_scc1 {L0}')
        A.label(L1)


def signal(A, line_sreg_expr, v0, v1, Q=None):
    A(f'v_mov_b32 v{v0}, 1')
    A('s_mov_b64 exec, 1')
    (Q or A)(f'buffer_atomic_add v{v0}, off, {WS}, {line_sreg_expr} sc1')
    A('s_mov_b64 exec, -1')


def line(A, dst, base, idx_sreg, mul=1, add_sreg=None):
    A(f's_lshl_b32 s{dst}, s{idx_sreg}, {7 + (mul - 1)}')
    if add_sreg is not None:
        A(f's_lshl_b32 s43, s{add_sreg}, 7')
        A(f's_add_u32 s{dst}, s{dst}, s43')
    A(f's_add_u32 s{dst}, s{dst}, {OFF_SY + base * 128}')


def g1_consumer(A, cfg, ST):
    vX, vW, vH, vAW, vAX, vHL, vT = 128, 130, 134, 135, 136, 137, 138
    NST = 3
    A(f'v_lshrrev_b32 v{vT}, 4, v0')
    A(f'v_and_b32 v{vT + 1}, 15, v0')
    A(f'v_lshrrev_b32 v{vT + 2}, 1, v{vT + 1}')
    A(f'v_xor_b32 v{vT + 2}, v{vT + 2}, v{vT}')
    A(f'v_lshlrev_b32 v{vT + 2}, 4, v{vT + 2}')
    A(f'v_lshl_add_u32 v{vX}, v{vT + 1}, 7, v{vT + 2}')
    A(f'v_xor_b32 v{vX + 1}, 64, v{vX}')
    t0 = vT + 3
    A(f'v_bfe_u32 v{t0}, v0, 2, 2')
    A(f'v_lshl_add_u32 v{t0 + 1}, v{vT}, 3, v{t0}')
    A(f'v_lshlrev_b32 v{t0 + 1}, 9, v{t0 + 1}')
    A(f'v_and_b32 v{t0 + 2}, 3, v0')
    A(f'v_lshl_add_u32 v{t0 + 1}, v{t0 + 2}, 3, v{t0 + 1}')
    A(f'v_add_u32 v{t0 + 1}, {G1B}, v{t0 + 1}')
    A(f'v_and_b32 v{t0 + 2}, 1, v{vT}')
    A(f'v_lshl_or_b32 v{t0}, v{t0 + 2}, 2, v{t0}')
    A(f's_lshl_b32 s15, s{S_W}, 2')
    for nt in range(4):
        A(f's_add_u32 s28, s15, {nt}')
        A(f'v_xor_b32 v{t0 + 2}, s28, v{t0}')
        A(f'v_lshl_add_u32 v{vW + nt}, v{t0 + 2}, 5, v{t0 + 1}')

    def reads(st, kb):
        r = []
        for nt in range(4):
            for t in range(2):
                d = 160 + 16 * st + nt * 4 + 2 * t
                r.append(f'ds_read_b64_tr_b16 v[{d}:{d + 1}], v{vW + nt} offset:{kb * 16384 + t * 2048}')
        for mt in range(8):
            d = 32 * st + mt * 4
            r.append(f'ds_read_b128 a[{d}:{d + 3}], v{vX + kb} offset:{mt * 2048}')
        return r

    CS, ONE = vT + 2, 156

    def substep(st, rd, extra, first=False, cs=None):
        i = 0
        if cs is not None:
            LC = A.newlabel('g1_nocs')
            A('s_cmp_lg_u32 s30, s35')
            A(f's_cbranch_scc1 {LC}')
            for nt in range(4):
                w = 160 + 16 * st + nt * 4
                A(f'v_mfma_f32_16x16x32_bf16 v[{CS + 4 * nt}:{CS + 4 * nt + 3}], v[{w}:{w + 3}], v[{ONE}:{ONE + 3}], ' + ('0' if cs == 0 else f'v[{CS + 4 * nt}:{CS + 4 * nt + 3}]'))
            A.label(LC)
        for mt in range(8):
            for nt in (range(4) if mt % 2 == 0 else range(3, -1, -1)):
                c = (nt * 8 + mt) * 4
                w = 160 + 16 * st + nt * 4
                x = 32 * st + mt * 4
                A(f'v_mfma_f32_16x16x32_bf16 v[{c}:{c + 3}], v[{w}:{w + 3}], a[{x}:{x + 3}], ' + ('0' if first else f'v[{c}:{c + 3}]'))
                if i < len(rd):
                    A(rd[i])
                elif i - len(rd) < len(extra):
                    A(extra[i - len(rd)])
                i += 1
        assert len(rd) + len(extra) <= 32

    A('s_mov_b32 s30, 0')
    A('s_mov_b32 s31, 0')
    A(f's_and_b32 s35, s{S_TM}, 3')
    A(f's_mov_b32 s34, {-2 * 16384 & 0xffffffff:#x}')
    A('s_barrier')
    ST.take(A, 1, 'main')
    for ins in reads(0, 0):
        A(ins)
    A(f'v_lshlrev_b32 v{vHL}, 4, v0')
    A(f's_mul_i32 s28, s{S_TM}, {8 * 112 * 1024}')
    A(f's_lshl_b32 s29, s{S_I}, 13')
    A(f's_add_u32 s28, s28, s29')
    A(f's_lshl_b32 s29, s{S_W}, 11')
    A(f's_add_u32 s28, s28, s29')
    A(f'v_add_u32 v{vH}, s28, v{vHL}')
    A(f's_lshl_b32 s29, s{S_W}, 14')
    A(f'v_add_u32 v{vHL}, s29, v{vHL}')
    A(f's_lshl_b32 s29, s{S_W}, 9')
    A(f's_add_u32 s29, s29, {AUXW}')
    A(f'v_lshl_add_u32 v{vAW}, v{vT + 1}, 3, s29')
    A(f'v_min_u32 v{vAX}, 1, v{vT}')
    A(f'v_lshlrev_b32 v{vAX}, 10, v{vAX}')
    A(f'v_lshl_add_u32 v{vAX}, v{vT + 1}, 3, v{vAX}')
    A(f'v_add_u32 v{vAX}, {AUXX}, v{vAX}')
    for r in range(4):
        A(f'v_mov_b32 v{ONE + r}, 0x3f803f80')
    A(f'v_lshlrev_b32 v{vT}, 4, v{vT}')
    A(f's_mul_i32 s29, s{S_TM}, {3584 * 4}')
    A(f's_lshl_b32 s28, s{S_I}, 10')
    A('s_add_u32 s29, s29, s28')
    A(f's_lshl_b32 s28, s{S_W}, 8')
    A('s_add_u32 s29, s29, s28')
    A(f's_add_u32 s29, s29, {OFF_CS}')
    A('s_waitcnt lgkmcnt(0)')
    upd = ['s_add_u32 s31, s31, 1', f's_cmp_eq_u32 s31, {NST}', 's_cselect_b32 s32, s34, 16384', 's_cselect_b32 s31, 0, s31',
           's_lshl_b32 s33, s32, 1', f'v_add_u32 v{vX}, s32, v{vX}', f'v_add_u32 v{vX + 1}, s32, v{vX + 1}'] + \
          [f'v_add_u32 v{vW + nt}, s33, v{vW + nt}' for nt in range(4)]
    st_ = ['s_mov_b32 exec_lo, 0x00010001', 's_mov_b32 exec_hi, 0x00010001'] + \
          [f'buffer_store_dwordx4 v[{CS + 4 * nt}:{CS + 4 * nt + 3}], v{vT}, {WS}, s29 offen offset:{nt * 64} sc1' for nt in range(4)] + \
          ['s_mov_b64 exec, -1']
    substep(0, reads(1, 1), upd, first=True, cs=0)
    LA, LV = A.newlabel('g1_loopa'), A.newlabel('g1_nova')
    A.label(LA)
    A(f's_cmp_lg_u32 s30, {cfg.get("p1sig", 1)}')
    A(f's_cbranch_scc1 {LV}')
    A('s_waitcnt vmcnt(0)')
    A.label(LV)
    A('s_waitcnt lgkmcnt(0)')
    A('s_barrier')
    LS = A.newlabel('g1_nost')
    substep(1, reads(0, 0), ['\n'.join(['s_cmp_lg_u32 s30, s35', f's_cbranch_scc1 {LS}'] + st_ + [LS + ':']), 's_add_u32 s30, s30, 1'], cs=1)
    A('s_waitcnt lgkmcnt(0)')
    substep(0, reads(1, 1), upd + ['s_cmp_lt_u32 s30, 4'], cs=0)
    A(f's_cbranch_scc1 {LA}')
    L, LL, LV = A.newlabel('g1_loop'), A.newlabel('g1_last'), A.newlabel('g1_nov')
    A.label(L)
    A(f's_cmp_lg_u32 s30, {cfg.get("cssig", 5)}')
    A(f's_cbranch_scc1 {LV}')
    A('s_waitcnt vmcnt(0)')
    A.label(LV)
    A('s_cmp_eq_u32 s30, 15')
    A('s_waitcnt lgkmcnt(0)')
    A('s_barrier')
    A(f's_cbranch_scc1 {LL}')
    substep(1, reads(0, 0), ['s_add_u32 s30, s30, 1'])
    A('s_waitcnt lgkmcnt(0)')
    substep(0, reads(1, 1), upd)
    A(f's_branch {L}')
    A.label(LL)
    aux = [f'ds_read_b64 v[{160 + 2 * nt}:{161 + 2 * nt}], v{vAW} offset:{nt * 128}' for nt in range(4)] + \
          [f'ds_read_b64 a[{2 * mt}:{2 * mt + 1}], v{vAX} offset:{mt * 128}' for mt in range(8)]
    substep(1, aux, [f's_mov_b32 s28, {OFF_H}'])
    A('s_waitcnt lgkmcnt(0)')
    A('s_barrier')
    ST.take(A, 2, 'main')

    def corr(mt):
        return [f'v_mfma_f32_16x16x16_bf16 v[{(nt * 8 + mt) * 4}:{(nt * 8 + mt) * 4 + 3}], v[{160 + 2 * nt}:{161 + 2 * nt}], a[{2 * mt}:{2 * mt + 1}], v[{(nt * 8 + mt) * 4}:{(nt * 8 + mt) * 4 + 3}]'
                for nt in range(4)]
    for ins in corr(0) + corr(1):
        A(ins)
    tp = [vT, vT + 4, vT + 8, vT + 12]
    k = 0
    for mt in range(8):
        cm = corr(mt + 2) if mt + 2 < 8 else []
        for p in range(2):
            o = tp[k & 3]
            k += 1
            for q in range(2):
                c = ((2 * p + q) * 8 + mt) * 4
                if cm:
                    A(cm.pop(0))
                for r in range(4):
                    A(f'v_max_f32 v{c + r}, 0, v{c + r}')
                for r in range(0, 4, 2):
                    A(f'v_pk_mul_f32 v[{c + r}:{c + r + 1}], v[{c + r}:{c + r + 1}], v[{c + r}:{c + r + 1}]')
                for r in range(0, 4, 2):
                    A(f'v_cvt_pk_bf16_f32 v{o + 2 * q + r // 2}, v{c + r}, v{c + r + 1}')
            A(f'buffer_store_dwordx4 v[{o}:{o + 3}], v{vH}, {WS}, s28 offen offset:{p * 1024} sc1')
            A(f'ds_write_b128 v{vHL}, v[{o}:{o + 3}] offset:{(mt * 2 + p) * 1024}')
        if mt < 7:
            A(f's_add_u32 s28, s28, {112 * 1024}')
    ST.take(A, 3, 'main')


VL = 40
SRD_L = 16


def g2_loader_setup(A):
    LB_, LE = A.newlabel('g2l_b'), A.newlabel('g2l_e')
    A(f's_and_b32 s28, s{S_W}, 1')
    A(f's_lshl_b32 s30, s28, 13')
    A(f's_mov_b32 s32, s{S_OWN}')
    for q in range(6):
        A(f's_cmp_le_u32 s{S_OWN}, {q}')
        A(f's_cselect_b32 s{33 + q}, {q + 1}, {q}')
    A('s_mov_b32 s24, 0')
    A(f's_cmp_ge_u32 s{S_W}, 2')
    A(f's_cbranch_scc1 {LB_}')
    for j in range(4):
        A(f's_mov_b32 s{SRD_L + j}, s{SRD_WS + j}')
    A(f's_mov_b32 s{SRD_L + 3}, 0x20000')
    for t in range(1, 4):
        A(f's_movk_i32 s{24 + t}, {t * 2048}')
    for q in range(7):
        A(f's_lshl_b32 s{32 + q}, s{32 + q}, 14')
    A(f's_lshl_b32 s29, s{S_TM}, 3')
    A(f's_lshl_b32 s28, s28, 2')
    A(f's_add_u32 s28, s28, s29')
    A(f's_mul_i32 s28, s28, {112 * 1024}')
    A(f's_lshl_b32 s29, s{S_KH}, 13')
    A(f's_add_u32 s28, s28, s29')
    A(f's_add_u32 s28, s28, {OFF_H}')
    A(f'v_add_u32 v{VL}, s28, v1')
    for j in range(1, 8):
        A(f'v_add_u32 v{VL + j}, {(j >> 1) * 112 * 1024 + (j & 1) * 1024 - (j & 3) * 1024}, v{VL}')
    A(f's_branch {LE}')
    A.label(LB_)
    make_srd(A, SRD_L, P_W2, 1024 * 3584 * 2)
    A(f's_add_u32 s30, s30, {G2B}')
    for t in range(1, 4):
        A(f's_mov_b32 s{24 + t}, {t * 131072}')
    for q in range(7):
        A(f's_lshl_b32 s{32 + q}, s{32 + q}, 20')
    A(f's_lshl_b32 s28, s28, 16')
    A(f's_lshl_b32 s29, s{S_TN2}, 8')
    A(f's_add_u32 s28, s28, s29')
    A(f's_lshl_b32 s29, s{S_KH}, 19')
    A(f's_add_u32 s28, s28, s29')
    A(f'v_lshrrev_b32 v{VL + 8}, 4, v0')
    A(f'v_and_b32 v{VL + 9}, 15, v0')
    for e in range(2):
        A(f'v_lshl_add_u32 v{VL + 10}, v{VL + 8}, 1, {8 * e}')
        A(f'v_xor_b32 v{VL + 10}, v{VL + 10}, v{VL + 9}')
        A(f'v_lshlrev_b32 v{VL + 10}, 4, v{VL + 10}')
        A(f'v_lshl_add_u32 v{VL + 10}, v{VL + 8}, 11, v{VL + 10}')
        A(f'v_add_u32 v{VL + 10}, s28, v{VL + 10}')
        for j in range(e, 8, 2):
            A(f'v_add_u32 v{VL + j}, {4 * j * 2048 - (j & 3) * 1024}, v{VL + 10}')
    A.label(LE)


def g2_issue(A, Q, k):
    A(f's_add_u32 s28, s{32 + (k >> 2)}, s{24 + (k & 3)}')
    for j in range(8):
        if (j & 3) == 0:
            A(f's_add_u32 m0, s30, {(k & 3) * 16384 + (j >> 2) * 4096}')
        Q(f'buffer_load_dwordx4 v{VL + j}, s[{SRD_L}:{SRD_L + 3}], s28 offen offset:{(j & 3) * 1024} sc1 lds', f'g2s{k}')


def g1_loader(A, cfg, ST, L_TAILA, L_TAILB):
    SRD = 8
    vD = 2
    LM, LB_, LE = A.newlabel('g1_misc'), A.newlabel('g1l_b'), A.newlabel('g1l_e')
    A('v_lshlrev_b32 v1, 4, v0')
    A(f's_cmp_eq_u32 s{S_W}, 3')
    A(f's_cbranch_scc1 {LM}')
    A(f's_cmp_lg_u32 s{S_W}, 0')
    A(f's_cbranch_scc1 {LB_}')
    A('v_lshrrev_b32 v20, 3, v0')
    A('v_lshlrev_b32 v21, 19, v20')
    A('v_and_b32 v22, 7, v0')
    A('v_lshrrev_b32 v23, 4, v0')
    A(f's_lshl_b32 s28, s{S_TM}, 15')
    A('v_add_u32 v21, s28, v21')
    for e in range(2):
        A(f'v_or_b32 v24, {4 * e}, v23')
        A('v_xor_b32 v24, v24, v22')
        A('v_lshl_add_u32 v24, v24, 4, v21')
        for q in range(e, 8, 2):
            A(f'v_add_u32 v{vD + q}, {q * 2048 - (q & 3) * 1024}, v24')
    A('s_mov_b32 s6, 0')
    A('s_movk_i32 s7, 16384')
    A('s_movk_i32 s12, 128')
    A('s_movk_i32 s13, 16384')
    A('s_waitcnt lgkmcnt(0)')
    make_srd(A, SRD, P_X, 4 << 20)
    A(f's_branch {LE}')
    A.label(LB_)
    A('v_lshrrev_b32 v25, 5, v0')
    A('v_and_b32 v26, 31, v0')
    A(f's_sub_u32 s29, s{S_W}, 1')
    A(f's_mul_i32 s28, s29, {32 * 7168}')
    A('s_lshl_b32 s6, s29, 14')
    A(f's_add_u32 s6, s6, {G1B}')
    A(f's_lshl_b32 s29, s{S_I}, 9')
    A('s_add_u32 s28, s28, s29')
    A('v_mul_u32_u24 v27, 7168, v25')
    A('v_add_u32 v27, s28, v27')
    for e in range(4):
        fc = (2 * (e & 1)) | ((e >> 1) << 2)
        A(f'v_or_b32 v28, {fc}, v25')
        A('v_lshlrev_b32 v28, 1, v28')
        A('v_xor_b32 v28, v28, v26')
        A('v_lshl_add_u32 v28, v28, 4, v27')
        for i in range(8):
            if (i & 1) == (e & 1) and (i >> 2) == (e >> 1):
                A(f'v_add_u32 v{vD + i}, {2 * i * 7168 - (i & 3) * 1024}, v28')
    A('s_mov_b32 s7, 32768')
    A(f's_mov_b32 s12, {64 * 7168}')
    A(f's_mov_b32 s13, {16 * 7168}')
    A('s_waitcnt lgkmcnt(0)')
    make_srd(A, SRD, P_W1, 1024 * 3584 * 2)
    A.label(LE)
    A('s_barrier')
    A(f's_and_b32 s14, s{S_TM}, 12')
    A('s_mov_b32 s15, s6')
    A('s_mul_i32 s31, s7, 3')
    A('s_add_u32 s31, s31, s6')

    def issue():
        A('s_mul_i32 s28, s14, s12')
        A('s_add_u32 s29, s28, s13')
        for j in range(16):
            if (j & 3) == 0:
                A(f's_add_u32 m0, s15, {(j >> 2) * 4096}')
            A(f'buffer_load_dwordx4 v{vD + (j & 7)}, s[{SRD}:{SRD + 3}], s{28 + (j >> 3)} offen offset:{(j & 3) * 1024} lds')
        A('s_add_u32 s14, s14, 1')
        A('s_and_b32 s14, s14, 15')
        A('s_add_u32 s15, s15, s7')
        A('s_cmp_eq_u32 s15, s31')
        A('s_cselect_b32 s15, s6, s15')
    issue()
    ST.take(A, 5, 'ld')
    if cfg.get('s0wait'):
        A('s_waitcnt vmcnt(0)')
        ST.take(A, 6, 'ld')
    issue()
    ST.take(A, 1, 'ld')
    fft2.ws_srd(A)
    A('s_mov_b32 s30, 0')
    A('s_waitcnt vmcnt(16)')
    ST.take(A, 2, 'ld')
    L = A.newlabel('g1l_loop')
    A.label(L)
    A('s_barrier')
    issue()
    A('s_add_u32 s30, s30, 1')
    A('s_cmp_lt_u32 s30, 14')
    A('s_waitcnt vmcnt(16)')
    A(f's_cbranch_scc1 {L}')
    g2_loader_setup(A)
    A('s_barrier')
    LT = A.newlabel('g1_tailb')
    A(f's_cmp_ge_u32 s{S_W}, 2')
    A(f's_cbranch_scc1 {LT}')
    A('s_waitcnt vmcnt(0)')
    A('s_barrier')
    A('s_barrier')
    t2_poll_issue(A)
    A('s_barrier')
    A(f's_branch {L_TAILA}')
    A.label(LT)
    QB = VQ(A)
    g2_issue(A, QB, 0)
    g2_issue(A, QB, 1)
    A('s_waitcnt vmcnt(16)')
    A('s_barrier')
    g2_issue(A, QB, 2)
    g2_issue(A, QB, 3)
    A('s_barrier')
    A('s_barrier')
    A(f's_branch {L_TAILB}')

    A.label(LM)
    Q = VQ(A)
    SRD_P, SRD_Q = 8, 12
    vz, vp = 16, 17
    A('s_waitcnt lgkmcnt(0)')
    A('s_barrier')
    fft2.ws_srd(A)
    LZ = A.newlabel('nozero')
    A('s_cmp_lg_u32 s48, 0')
    A(f's_cbranch_scc1 {LZ}')
    A('v_lshlrev_b32 v20, 7, v0')
    for r in range(4):
        A(f'v_mov_b32 v{28 + r}, 0')
    for n in range(L_N // 64):
        A(f's_mov_b32 s28, {OFF_SY + n * 8192}')
        A(f'buffer_store_dwordx4 v[28:31], v20, {WS}, s28 offen sc1')
    A('v_mov_b32 v20, 1')
    A('s_waitcnt vmcnt(0)')
    A('s_mov_b64 exec, 1')
    A(f'global_store_dword v28, v20, s[{P_DBG}:{P_DBG + 1}] sc1')
    A('s_mov_b64 exec, -1')
    A.label(LZ)
    fft2.repack_load(A, 64, 24)
    ST.take(A, 1, 'misc')
    make_srd(A, 20, P_W1, 1024 * 3584 * 2)
    A('v_lshrrev_b32 v20, 3, v0')
    A('v_mul_u32_u24 v20, 7168, v20')
    A('v_and_b32 v21, 7, v0')
    A('v_lshl_add_u32 v20, v21, 6, v20')
    A(f's_and_b32 s28, s{S_TM}, 12')
    A('s_add_u32 s28, s28, 2')
    A('s_lshl_b32 s28, s28, 1')
    A(f's_and_b32 s29, s{S_TM}, 3')
    A('s_add_u32 s28, s28, s29')
    A(f's_mul_i32 s30, s28, {32 * 7168}')
    A(f's_lshl_b32 s29, s{S_I}, 9')
    A('s_add_u32 s30, s30, s29')
    npf = 4 if cfg.get('pf_s23', 1) else 0
    if npf:
        A(f's_waitcnt vmcnt({cfg.get("pf_wait", 30)})')
    for n in range(npf):
        A('buffer_load_dword v22, v20, s[20:23], s30 offen')
        A(f's_add_u32 s30, s30, {8 * 7168}')
    boot_check(A, vz, vp, check=False)
    rps, wsig = cfg.get('rps', -1), cfg.get('wsig', 1)

    def rpst():
        ST.take(A, 2, 'misc')
        fft2.repack_store(A, 64, 24, npf + 1)
        ST.take(A, 3, 'misc')
    if rps == -2:
        rpst()
    A('s_barrier')
    if rps == -1:
        rpst()
    p1sig = cfg.get('p1sig', 1)
    KP, KA, KW = cfg.get('kp', 8), cfg.get('ka', 9), cfg.get('kw', 11)
    AD = 64
    for k in range(14):
        if k == KW + 1:
            A('s_waitcnt lgkmcnt(0)')
        A('s_barrier')
        if k in cfg.get('gk', []):
            ST.take(A, 1 + cfg['gk'].index(k), 'gk')
        if k == rps:
            rpst()
        if k == min(wsig, p1sig):
            boot_check(A, vz, vp, issue=False)
            ST.take(A, 4, 'misc')
        if k == wsig:
            if wsig > p1sig:
                Q.drain()
            line(A, 42, L_W, S_TM)
            signal(A, 's42', 20, 21, Q)
        if k == p1sig:
            line(A, 42, L_P1, S_TM)
            signal(A, 's42', 20, 21, Q)
        if k == cfg.get('cssig', 5):
            line(A, 42, L_CS, S_I)
            signal(A, 's42', 20, 21, Q)
        pk = cfg.get('pfk', 1)
        if pk <= k < pk + 8 and cfg.get('pf_w2', 1):
            if k == pk:
                make_srd(A, SRD_P, P_W2, 1024 * 3584 * 2)
                A(f's_mul_i32 s39, s{S_TM}, 14')
                A(f's_add_u32 s39, s39, s{S_I}')
                A('s_lshl_b32 s39, s39, 15')
                A('v_lshlrev_b32 v18, 6, v0')
            Q(f'buffer_load_dword v19, v18, s[{SRD_P}:{SRD_P + 3}], s39 offen', 'pf')
            A('s_add_u32 s39, s39, 4096')
        if k == KP:
            line(A, 42, L_P1, S_TM)
            line(A, 41, L_CS, S_I)
            A(f'v_mov_b32 v{vz}, s42')
            A(f'v_writelane_b32 v{vz}, s41, 1')
            Q(f'buffer_load_dword v{vp}, v{vz}, {WS}, 0 offen sc1', 'poll')
        if k == KA:
            Q.wait('poll')
            spin(A, vz, vp, 0, 16, nl=2, first_done=True)
            A(f's_lshl_b32 s28, s{S_I}, 10')
            A(f's_add_u32 s28, s28, {OFF_CS}')
            for p in range(16):
                Q(f'buffer_load_dwordx4 v[{AD + 4 * p}:{AD + 4 * p + 3}], v1, {WS}, s28 offen sc1', 'aux')
                if p < 15:
                    A(f's_add_u32 s28, s28, {3584 * 4}')
            make_srd(A, SRD_Q, P_B1, 3584 * 2)
            A('v_lshlrev_b32 v20, 3, v0')
            A(f's_lshl_b32 s28, s{S_I}, 9')
            Q(f'buffer_load_dwordx2 v[128:129], v20, s[{SRD_Q}:{SRD_Q + 3}], s28 offen', 'aux')
            A(f's_lshl_b32 s28, s{S_TM}, 10')
            A(f's_add_u32 s28, s28, {OFF_ST}')
            Q(f'buffer_load_dwordx4 v[132:135], v1, {WS}, s28 offen sc1', 'aux')
            g2_loader_setup(A)
        if k == KW:
            Q.wait('aux')
            for st in (32, 16, 8, 4):
                for p in range(st):
                    A(f'v_add_f32 v{AD + p}, v{AD + p}, v{AD + p + st}')
            O = AD + 8
            for c in range(4):
                A(f'v_cvt_pk_bf16_f32 v{AD + 4 + c}, v{AD + c}, v{AD + c}')
            for c in range(4):
                A(f'v_and_b32 v{O + 2 * c}, 0xffff0000, v{AD + 4 + c}')
                A(f'v_sub_f32 v{AD + c}, v{AD + c}, v{O + 2 * c}')
                A(f'v_cvt_pk_bf16_f32 v{O + 2 * c + 1}, v{AD + c}, 0')
                if c & 1:
                    A(f'v_bfi_b32 v{O + 2 * c}, v{136}, v{AD + 4 + c}, v{128 + (c >> 1)}')
                else:
                    if c == 0:
                        A('v_mov_b32 v136, 0xffff')
                    A(f'v_alignbit_b32 v{O + 2 * c}, v{128 + (c >> 1)}, v{AD + 4 + c}, 16')
            A(f'v_lshlrev_b32 v20, 5, v0')
            A(f'v_add_u32 v20, {AUXW}, v20')
            A(f'ds_write_b128 v20, v[{O}:{O + 3}]')
            A(f'ds_write_b128 v20, v[{O + 4}:{O + 7}] offset:16')
            A('v_mov_b32 v133, v132')
            A('v_mov_b32 v135, v134')
            A(f'v_add_u32 v20, {AUXX}, v1')
            A('ds_write_b128 v20, v[132:135]')
            for r in range(4):
                A(f'v_mov_b32 v{AD + r}, 0')
            A(f'ds_write_b128 v20, v[{AD}:{AD + 3}] offset:1024')
    A(f's_branch {LT}')


def t2_poll_issue(A):
    line(A, 42, L_T2, S_TM)
    A('v_mov_b32 v16, s42')
    A(f'buffer_load_dword v17, v16, {WS}, 0 offen sc1')


def tail_loaders(A, cfg, ST, L_TAILA, L_TAILB):
    NS = 28
    LJ = [A.newlabel(f'g2l_k{k}') for k in range(4)]
    A.label(L_TAILA)
    A('v_lshrrev_b32 v20, 4, v0')
    A('v_and_b32 v21, 7, v0')
    A('v_xor_b32 v21, v21, v20')
    A('v_lshrrev_b32 v20, 3, v0')
    A('v_lshlrev_b32 v20, 7, v20')
    A('v_lshl_add_u32 v20, v21, 4, v20')
    A('v_xor_b32 v21, 64, v20')
    A('s_lshl_b32 s28, s2, 14')
    A(f's_add_u32 s28, s28, s30')
    A(f's_add_u32 s28, s28, {OFF_T2}')
    A('s_waitcnt vmcnt(0)')
    spin(A, 16, 17, 0, 32, first_done=True)
    ST.take(A, 3, 'ld')
    for j in range(8):
        if (j & 3) == 0:
            A(f's_add_u32 m0, s30, {T2IN + (j >> 2) * 4096}')
            if j:
                A('s_add_u32 s28, s28, 4096')
        A(f'buffer_load_dwordx4 v{20 + (j & 1)}, {WS}, s28 offen offset:{(j & 3) * 1024} sc1 lds')
    line(A, 42, L_H, S_TM, 2, S_KH)
    A('v_mov_b32 v16, s42')
    A('s_waitcnt vmcnt(0)')
    A('s_barrier')
    A('s_barrier')
    LM = A.newlabel('g2l_mid')
    A(f's_cmp_lg_u32 s{S_MID}, 0')
    A(f's_cbranch_scc1 {LM}')
    R = [A.newlabel(f'g2l_r{k}') for k in range(3)]
    A('s_barrier')
    for k in range(2):
        A(f'buffer_load_dword v17, v16, {WS}, 0 offen sc1')
        A('s_barrier')
        A('s_waitcnt vmcnt(0)')
        A('v_readfirstlane_b32 s28, v17')
        A('s_cmp_ge_u32 s28, 28')
        A(f's_cbranch_scc1 {R[k]}')
    A('s_barrier')
    spin(A, 16, 17, 0, 28)
    ST.take(A, 4, 'ld')
    Q = VQ(A)
    for k in (4, 5, 6):
        g2_issue(A, Q, k)
    A(f's_branch {LJ[3]}')
    A.label(R[0])
    ST.take(A, 4, 'ld')
    g2_issue(A, Q, 4)
    A('s_barrier')
    g2_issue(A, Q, 5)
    LR = A.newlabel('g2l_r01')
    A(f's_branch {LR}')
    A.label(R[1])
    ST.take(A, 4, 'ld')
    g2_issue(A, Q, 4)
    g2_issue(A, Q, 5)
    A.label(LR)
    A('s_barrier')
    g2_issue(A, Q, 6)
    A(f's_branch {LJ[3]}')
    A.label(LM)
    spin(A, 16, 17, 0, 28)
    ST.take(A, 4, 'ld')
    for k in range(4):
        g2_issue(A, Q, k)
    A('s_waitcnt vmcnt(24)')
    A('s_barrier')
    A(f's_branch {LJ[0]}')
    A.label(L_TAILB)
    A('s_waitcnt vmcnt(0)')
    A('s_barrier')
    A('s_barrier')
    A('s_barrier')
    KS, KP = cfg.get('ssig', 3), 21
    LE = A.newlabel('g2l_end')
    for k in range(NS):
        if k < 4:
            A.label(LJ[k])
        if k <= 23:
            n = 16 + (1 if k in (KS + 1, KS + 2, KP + 1) else 0) * 0
            A(f's_waitcnt vmcnt({n})')
        A('s_barrier')
        if k == KS:
            LS = A.newlabel('nossig')
            A(f's_cmp_lg_u32 s{S_W}, 2')
            A(f's_cbranch_scc1 {LS}')
            line(A, 42, L_S, S_TM)
            signal(A, 's42', 20, 21)
            A.label(LS)
        if k == KP:
            line(A, 42, L_S, S_TM)
            A('v_mov_b32 v16, s42')
            A(f'buffer_load_dword v17, v16, {WS}, 0 offen sc1')
        if k + 4 < NS:
            g2_issue(A, Q, k + 4)
        if k == 23:
            break
    A('v_lshrrev_b32 v20, 3, v0')
    A('v_lshrrev_b32 v21, 4, v0')
    A('v_and_b32 v22, 7, v0')
    A('v_xor_b32 v21, v21, v22')
    A('v_lshlrev_b32 v21, 4, v21')
    A('v_lshl_add_u32 v20, v20, 11, v21')
    A('v_xor_b32 v21, 64, v20')
    A(f'v_add_u32 v21, {8 * 2048 - 1024}, v21')
    A(f'v_add_u32 v22, {16 * 2048 - 2048}, v20')
    A(f'v_add_u32 v23, {16 * 2048 - 2048}, v21')
    A(f's_lshl_b32 s28, s{S_TM}, 7')
    A(f's_lshl_b32 s29, s{S_W}, 5')
    A('s_add_u32 s28, s28, s29')
    A('s_lshl_b32 s28, s28, 11')
    A(f's_lshl_b32 s29, s{S_I}, 7')
    A('s_add_u32 s28, s28, s29')
    A(f's_add_u32 s28, s28, {OFF_S}')
    A(f's_lshl_b32 s29, s{S_W}, 12')
    A('s_waitcnt vmcnt(16)')
    spin(A, 16, 17, 0, 16, first_done=True)
    A(f's_add_u32 m0, s29, {T2IN}')
    for j in range(4):
        A(f'buffer_load_dwordx4 v{20 + j}, {WS}, s28 offen offset:{j * 1024} sc1 lds')
    A('s_barrier')
    A('s_waitcnt vmcnt(12)')
    A('s_barrier')
    A('s_waitcnt vmcnt(4)')
    A('s_barrier')
    A('s_waitcnt vmcnt(0)')
    A('s_barrier')
    ST.flush(A, cfg.get('ldst', [0, 1, 2, 3, 4, 7]), P_WS, S_W, wadd=4)
    A('s_endpgm')


def tail_consumer(A, cfg, ST):
    RG = fft2.ifft_regs(1)
    assert RG['end'] <= 192
    A('v_mbcnt_lo_u32_b32 v0, -1, 0')
    A('v_mbcnt_hi_u32_b32 v0, -1, v0')
    fft2.ifft_consts(A, 2, RG, XCH, T2IN)
    line(A, 42, L_H, S_TM, 2, S_KH)

    def hsig(n):
        LS = A.newlabel('nohsig')
        A(f's_cmp_lg_u32 s{S_MID}, 0')
        A(f's_cbranch_scc1 {LS}')
        A(f's_waitcnt vmcnt({n})')
        signal(A, 's42', 190, 191)
        A.label(LS)
    hs = cfg.get('hsig', 2)
    if hs == 0:
        hsig(0)
    A('s_waitcnt lgkmcnt(0)')
    A('s_barrier')
    ST.take(A, 4, 'main')
    fft2.ifft_compute(A, 2, RG, mid_hook=(lambda A: hsig(0)) if hs == 1 else None)
    if hs == 2:
        hsig(4)
    ST.take(A, 5, 'main')
    vX, vW, vO, vE, vSr, vT = 64, 66, 70, 71, 72, 74
    vB2, vRI, vXD, vSD = 84, 88, 96, 112
    FR = 128
    SRD_A, SRD_B, SRD_C = 16, 20, 24
    A(f's_lshr_b32 s28, s{S_W}, 1')
    A(f's_and_b32 s29, s{S_W}, 1')
    A(f'v_lshrrev_b32 v{vT}, 4, v0')
    A(f'v_lshlrev_b32 v{vE}, 4, v0')
    A(f's_lshl_b32 s31, s28, 13')
    A(f'v_add_u32 v{vX}, s31, v{vE}')
    t0 = vT + 2
    A(f'v_bfe_u32 v{t0}, v0, 2, 2')
    A(f'v_lshl_add_u32 v{t0}, v{vT}, 2, v{t0}')
    A(f'v_and_b32 v{t0 + 1}, 7, v{t0}')
    A(f'v_lshlrev_b32 v{t0}, 8, v{t0}')
    A(f'v_and_b32 v{t0 + 2}, 3, v0')
    A(f'v_lshl_add_u32 v{t0}, v{t0 + 2}, 3, v{t0}')
    A(f'v_add_u32 v{t0}, {G2B}, v{t0}')
    A(f's_lshl_b32 s31, s29, 1')
    A(f's_lshl_b32 s32, s{S_KH}, 2')
    A(f's_add_u32 s31, s31, s32')
    for nt in range(4):
        A(f's_xor_b32 s32, s31, {(nt & 1) | ((nt >> 1) << 2)}')
        A(f'v_xor_b32 v{t0 + 2}, s32, v{t0 + 1}')
        A(f'v_lshl_add_u32 v{vW + nt}, v{t0 + 2}, 5, v{t0}')

    def reads(st, kb):
        w, x = [], []
        for nt in range(4):
            for t in range(2):
                d = FR + 32 * st + nt * 4 + 2 * t
                w.append(f'ds_read_b64_tr_b16 v[{d}:{d + 1}], v{vW + nt} offset:{kb * 8192 + t * 4096}')
        for mt in range(4):
            d = FR + 32 * st + 16 + mt * 4
            x.append(f'ds_read_b128 v[{d}:{d + 3}], v{vX} offset:{(mt * 2 + kb) * 1024}')
        return w + x

    def substep(st, rd, extra, first=False):
        rd = list(rd)
        extra = list(extra)
        for mt in range(4):
            for nt in (range(4) if mt % 2 == 0 else range(3, -1, -1)):
                c = (nt * 4 + mt) * 4
                w = FR + 32 * st + nt * 4
                x = FR + 32 * st + 16 + mt * 4
                A(f'v_mfma_f32_16x16x32_bf16 v[{c}:{c + 3}], v[{w}:{w + 3}], v[{x}:{x + 3}], ' + ('0' if first else f'v[{c}:{c + 3}]'))
                if rd:
                    A(rd.pop(0))
                else:
                    for _ in range(3):
                        if extra:
                            A(extra.pop(0))
        for e in extra:
            A(e)
    A('s_barrier')
    for ins in reads(0, 0):
        A(ins)
    A(f's_lshl_b32 s30, s{S_I}, 7')
    A(f's_lshl_b32 s31, s29, 6')
    A(f's_add_u32 s30, s30, s31')
    A(f'v_lshlrev_b32 v{vT + 1}, 3, v{vT}')
    make_srd(A, SRD_B, P_B2, 1024 * 2)
    for nt in range(2):
        A(f'buffer_load_dwordx2 v[{vB2 + 2 * nt}:{vB2 + 2 * nt + 1}], v{vT + 1}, s[{SRD_B}:{SRD_B + 3}], s30 offen offset:{nt * 32}')
    make_srd(A, SRD_A, P_X, 4 << 20)
    make_srd(A, SRD_C, P_OUT, 4 << 20)
    A(f'v_and_b32 v{t0}, 1, v{vT}')
    A(f'v_lshlrev_b32 v{t0}, 1, v{t0}')
    A(f'v_lshrrev_b32 v{t0 + 1}, 1, v{vT}')
    A(f'v_add_u32 v{t0}, v{t0}, v{t0 + 1}')
    A(f'v_lshl_add_u32 v{t0 + 3}, v{t0}, 4, s30')
    A(f'v_and_b32 v{t0 + 1}, 7, v0')
    A(f'v_lshlrev_b32 v{t0 + 1}, 8, v{t0 + 1}')
    A(f'v_bfe_u32 v{t0 + 2}, v0, 3, 1')
    A(f'v_add_u32 v{t0 + 1}, v{t0 + 1}, v{t0 + 2}')
    A(f's_lshl_b32 s31, s{S_TM}, 4')
    A(f's_lshl_b32 s32, s28, 3')
    A(f's_add_u32 s31, s31, s32')
    A(f'v_add_u32 v{t0 + 1}, s31, v{t0 + 1}')
    A(f'v_lshl_add_u32 v{vO}, v{t0 + 1}, 11, v{t0 + 3}')
    for mt in range(4):
        A(f's_mov_b32 s33, {mt * 4096}')
        A(f'buffer_load_dwordx4 v[{vXD + 4 * mt}:{vXD + 4 * mt + 3}], v{vO}, s[{SRD_A}:{SRD_A + 3}], s33 offen')
    A(f'v_and_b32 v{t0 + 1}, 15, v0')
    A(f'v_lshlrev_b32 v{t0 + 2}, 3, v{t0 + 1}')
    A(f's_lshl_b32 s31, s31, 6')
    A(f's_add_u32 s31, s31, {OFF_ST}')
    for mt in range(4):
        A(f'buffer_load_dword v{vRI + mt}, v{t0 + 2}, {WS}, s31 offen offset:{mt * 128 + 4} sc1')
    A(f's_lshl_b32 s32, s29, 2')
    A(f'v_add_u32 v{t0}, s32, v{t0}')
    A(f'v_lshrrev_b32 v{t0 + 2}, 1, v{t0 + 1}')
    A(f'v_xor_b32 v{t0}, v{t0}, v{t0 + 2}')
    A(f'v_lshlrev_b32 v{t0}, 4, v{t0}')
    A(f'v_lshl_add_u32 v{t0}, v{t0 + 1}, 7, v{t0}')
    A(f's_lshl_b32 s32, s28, 13')
    A(f's_add_u32 s32, s32, {T2IN}')
    A(f'v_add_u32 v{vSr}, s32, v{t0}')
    A('s_xor_b32 s39, s2, 1')
    A('s_lshl_b32 s36, s2, 7')
    A('s_lshl_b32 s37, s39, 7')
    A(f's_lshl_b32 s31, s{S_W}, 2')
    A(f's_add_u32 s31, s31, {OFF_SY + L_EX * 128}')
    A('s_add_u32 s36, s36, s31')
    A('s_add_u32 s37, s37, s31')
    A('s_lshl_b32 s38, s2, 15')
    A('s_lshl_b32 s39, s39, 15')
    A(f's_lshl_b32 s31, s{S_W}, 13')
    A(f's_add_u32 s31, s31, {OFF_EX}')
    A('s_add_u32 s38, s38, s31')
    A('s_add_u32 s39, s39, s31')
    A('s_mov_b32 s30, 0')
    A('s_mov_b32 s31, 0')
    A(f's_mov_b32 s34, {-3 * 16384 & 0xffffffff:#x}')
    A('s_waitcnt lgkmcnt(0)')
    upd = ['s_add_u32 s31, s31, 1', 's_cmp_eq_u32 s31, 4', 's_cselect_b32 s32, s34, 16384', 's_cselect_b32 s31, 0, s31',
           f'v_add_u32 v{vX}, s32, v{vX}'] + [f'v_add_u32 v{vW + nt}, s32, v{vW + nt}' for nt in range(4)]
    substep(0, reads(1, 1), upd, first=True)
    L, LL, LV = A.newlabel('g2_loop'), A.newlabel('g2_last'), A.newlabel('g2_nov')
    A.label(L)
    A(f's_cmp_lg_u32 s30, {cfg.get("ssig", 3)}')
    A(f's_cbranch_scc1 {LV}')
    A('s_waitcnt vmcnt(0)')
    A.label(LV)
    A('s_cmp_eq_u32 s30, 27')
    A('s_waitcnt lgkmcnt(0)')
    A('s_barrier')
    A(f's_cbranch_scc1 {LL}')
    substep(1, reads(0, 0), ['s_add_u32 s30, s30, 1'])
    A('s_waitcnt lgkmcnt(0)')
    substep(0, reads(1, 1), upd)
    A(f's_branch {L}')
    A.label(LL)
    substep(1, [f'ds_read_b128 v[{vSD + 4 * mt}:{vSD + 4 * mt + 3}], v{vSr} offset:{mt * 2048}' for mt in range(4)], [])
    ST.take(A, 6, 'main')
    for q in range(8):
        if q == 4:
            A('s_add_u32 s38, s38, 4096')
        A(f'buffer_store_dwordx4 v[{32 + 4 * q}:{35 + 4 * q}], v{vE}, {WS}, s38 offen offset:{(q & 3) * 1024} sc1')
    A(f'v_mov_b32 v{vT}, 1')
    A(f'v_mov_b32 v{vT + 1}, 0')
    BF = FR + 48
    for nt in range(2):
        for h in range(2):
            A(f'v_lshlrev_b32 v{BF + 4 * nt + 2 * h}, 16, v{vB2 + 2 * nt + h}')
            A(f'v_and_b32 v{BF + 4 * nt + 2 * h + 1}, 0xffff0000, v{vB2 + 2 * nt + h}')
    A('s_add_u32 s33, s39, 4096')
    A('s_waitcnt vmcnt(0) lgkmcnt(0)')
    A('s_mov_b64 exec, 1')
    A(f'buffer_store_dword v{vT}, off, {WS}, s36 sc1')
    spin(A, vT + 1, vT + 2, 's37', 1)
    A('s_mov_b64 exec, -1')
    for q in (0, 4, 1, 5, 2, 6, 3, 7):
        A(f'buffer_load_dwordx4 v[{32 + 4 * q}:{35 + 4 * q}], v{vE}, {WS}, s{39 if q < 4 else 33} offen offset:{(q & 3) * 1024} sc1')
    A('s_mov_b32 s6, 0xbfb8aa3b')
    A('s_mov_b32 s7, 0xbfb8aa3b')
    A('s_mov_b32 s35, 0xffff0000')
    E = FR
    for mt in range(4):
        c0 = mt * 4
        c1 = 16 + mt * 4
        A(f's_waitcnt vmcnt({6 - mt})')
        for (c, nt) in ((c0, 0), (c1, 1)):
            for r in (0, 2):
                A(f'v_pk_add_f32 v[{c + r}:{c + r + 1}], v[{c + r}:{c + r + 1}], v[{c + r + 32}:{c + r + 33}]')
        A(f'v_mov_b32 v{vT + 2}, v{vRI + mt}')
        for (c, nt) in ((c0, 0), (c1, 1)):
            for r in (0, 2):
                A(f'v_pk_fma_f32 v[{c + r}:{c + r + 1}], v[{c + r}:{c + r + 1}], v[{vT + 2}:{vT + 3}], v[{BF + 4 * nt + r}:{BF + 4 * nt + r + 1}] op_sel_hi:[1,0,1]')
        for r in range(4):
            A(f'v_permlane16_swap_b32 v{c0 + r}, v{c1 + r}')
        vals = [c0, c0 + 2, c1, c1 + 2]
        e = E + (mt & 1) * 24
        for q in range(4):
            A(f'v_pk_mul_f32 v[{e + 2 * q}:{e + 2 * q + 1}], v[{vals[q]}:{vals[q] + 1}], s[6:7]')
        for q in range(8):
            A(f'v_exp_f32 v{e + q}, v{e + q}')
        for q in range(4):
            A(f'v_lshlrev_b32 v{e + 8 + 2 * q}, 16, v{vSD + 4 * mt + q}')
            A(f'v_and_b32 v{e + 9 + 2 * q}, s35, v{vSD + 4 * mt + q}')
        for q in range(4):
            A(f'v_pk_add_f32 v[{e + 2 * q}:{e + 2 * q + 1}], v[{e + 2 * q}:{e + 2 * q + 1}], 1.0 op_sel_hi:[1,0]')
        for q in range(8):
            A(f'v_rcp_f32 v{e + q}, v{e + q}')
        for q in range(4):
            A(f'v_pk_mul_f32 v[{e + 8 + 2 * q}:{e + 9 + 2 * q}], v[{e + 8 + 2 * q}:{e + 9 + 2 * q}], v[{vals[q]}:{vals[q] + 1}]')
        for q in range(4):
            A(f'v_lshlrev_b32 v{e + 16 + 2 * q}, 16, v{vXD + 4 * mt + q}')
            A(f'v_and_b32 v{e + 17 + 2 * q}, s35, v{vXD + 4 * mt + q}')
        for q in range(4):
            A(f'v_pk_fma_f32 v[{e + 2 * q}:{e + 2 * q + 1}], v[{e + 2 * q}:{e + 2 * q + 1}], v[{e + 8 + 2 * q}:{e + 9 + 2 * q}], v[{e + 16 + 2 * q}:{e + 17 + 2 * q}]')
        for q in range(4):
            A(f'v_cvt_pk_bf16_f32 v{vXD + 4 * mt + q}, v{e + 2 * q}, v{e + 2 * q + 1}')
        A(f's_mov_b32 s31, {mt * 4096}')
        A(f'buffer_store_dwordx4 v[{vXD + 4 * mt}:{vXD + 4 * mt + 3}], v{vO}, s[{SRD_C}:{SRD_C + 3}], s31 offen {cfg.get("ostore", "")}')
    ST.flush(A, cfg.get('cst', [0, 1, 2, 3, 4, 5, 6, 7]), P_WS, S_W)
    A('s_endpgm')


def k_fused(cfg):
    A = Asm()
    ST = Stamps(cfg.get('stamp'), 0, cfg.get('sets', ['main', 'ld']))
    A('s_cmp_ge_u32 s2, 256')
    A('s_cbranch_scc1 f_exit')
    ST.take(A, 0)
    A('s_load_dwordx16 s[60:75], s[0:1], 0')
    A('s_load_dwordx4 s[52:55], s[0:1], 64')
    A('s_load_dwordx2 s[50:51], s[0:1], 80')
    A('v_lshrrev_b32 v1, 6, v0')
    A('v_and_b32 v0, 63, v0')
    A(f'v_mov_b32 v2, {fft2.FLG}')
    A('v_mov_b32 v3, 0')
    A('ds_write_b32 v2, v3')
    A('s_mov_b32 s48, s2')
    A('s_and_b32 s5, s2, 7')
    A('s_lshr_b32 s6, s2, 3')
    A('s_lshr_b32 s3, s5, 1')
    A('s_lshl_b32 s3, s3, 2')
    A('s_lshr_b32 s7, s6, 3')
    A('s_add_u32 s3, s3, s7')
    A('s_and_b32 s4, s6, 7')
    A('s_lshl_b32 s4, s4, 1')
    A(f's_and_b32 s{S_KH}, s5, 1')
    A(f's_add_u32 s4, s4, s{S_KH}')
    A(f'v_readfirstlane_b32 s{S_W}, v1')
    A('s_lshl_b32 s2, s3, 4')
    A('s_add_u32 s2, s2, s4')
    A(f's_lshr_b32 s{S_TN2}, s4, 1')
    A(f's_min_u32 s{S_OWN}, s{S_TN2}, 6')
    A('s_cmp_ge_u32 s4, 14')
    A(f's_cselect_b32 s{S_MID}, 1, 0')
    if ST.on:
        for j in range(1, 8):
            A(f's_mov_b64 s[{SB + 8 + 2 * j}:{SB + 9 + 2 * j}], -1')
    A(f's_cmp_ge_u32 s{S_W}, 4')
    A('s_cbranch_scc1 f_hi')
    fft2.p1_rows(A, cfg, ST, P1_LB)
    A(f's_cmp_lg_u32 s{S_MID}, 0')
    A('s_cbranch_scc1 f_midlo')
    g1_consumer(A, cfg, ST)
    A.label('f_tailc')
    tail_consumer(A, cfg, ST)
    A.label('f_hi')
    A(f's_cmp_lg_u32 s{S_MID}, 0')
    A('s_cbranch_scc1 f_midhi')
    A(f's_sub_u32 s{S_W}, s{S_W}, 4')
    g1_loader(A, cfg, ST, 'f_taila', 'f_tailb')
    tail_loaders(A, cfg, ST, 'f_taila', 'f_tailb')
    A.label('f_midlo')
    boot_check(A, 2, 3, check=False)
    A(f'v_mov_b32 v4, {fft2.FLG}')
    A('v_mov_b32 v5, 1')
    A('s_waitcnt vmcnt(0)')
    A('s_mov_b64 exec, 1')
    A('ds_add_rtn_u32 v5, v4, v5')
    A('s_mov_b64 exec, -1')
    A('s_waitcnt lgkmcnt(0)')
    A('v_readfirstlane_b32 s28, v5')
    A('s_cmp_lg_u32 s28, 7')
    A('s_cbranch_scc1 f_mid')
    boot_check(A, 2, 3, issue=False)
    line(A, 42, L_P1, S_TM)
    signal(A, 's42', 2, 3)
    A('s_branch f_mid')
    A.label('f_midhi')
    A('s_waitcnt lgkmcnt(0)')
    A('s_barrier')
    fft2.ws_srd(A)
    A.label('f_mid')
    S_Q, S_CL = 20, 21
    A(f's_lshl_b32 s{S_Q}, s{S_TM}, 1')
    A(f's_add_u32 s{S_Q}, s{S_Q}, s{S_KH}')
    A(f's_lshr_b32 s{S_CL}, s{S_Q}, 3')
    A(f's_and_b32 s{S_Q}, s{S_Q}, 7')

    def pre(A, D, va):
        LS = A.newlabel('mid_norp')
        A(f's_cmp_lg_u32 s{S_W}, 7')
        A(f's_cbranch_scc1 {LS}')
        fft2.repack_load(A, D, va, 16, 24)
        A.label(LS)

    def wait_t(A, D, va, load_w, load_t):
        LS = A.newlabel('mid_norp')
        boot_check(A, va + 4, va + 5, check=False)
        A(f's_cmp_lg_u32 s{S_W}, 7')
        A(f's_cbranch_scc1 {LS}')
        A('s_mov_b32 s37, s29')
        fft2.repack_store(A, D, va, 1)
        A('s_mov_b32 s29, s37')
        boot_check(A, va + 4, va + 5, issue=False)
        line(A, 42, L_W, S_TM)
        signal(A, 's42', va, va + 1)
        A.label(LS)
        boot_check(A, va + 4, va + 5, issue=False)
        A(f'v_and_b32 v{va}, 31, v0')
        A(f'v_lshlrev_b32 v{va}, 7, v{va}')
        A(f's_mov_b32 s42, {OFF_SY + L_P1 * 128}')
        A('s_mov_b32 s40, 0')
        L0, LB_, LT, LE = A.newlabel('mid_p0'), A.newlabel('mid_both'), A.newlabel('mid_t'), A.newlabel('mid_go')
        A.label(L0)
        A(f'buffer_load_dword v{va + 1}, v{va}, {WS}, s42 offen sc1')
        A('s_add_u32 s40, s40, 1')
        A('s_waitcnt vmcnt(0)')
        A(f'v_cmp_gt_u32 vcc, 16, v{va + 1}')
        A('s_cmp_eq_u32 vcc_lo, 0')
        A(f's_cbranch_scc1 {LB_}')
        A(f's_cmp_ge_u32 s40, {SPIN}')
        A(f's_cbranch_scc1 {LB_}')
        A('s_lshr_b32 s41, vcc_lo, 16')
        A(f's_cbranch_scc1 {L0}')
        load_w()
        spin(A, va, va + 1, 's42', 16, nl=16)
        ST.take(A, 2, 'mid')
        load_t()
        A('s_waitcnt vmcnt(0)')
        A(f's_branch {LE}')
        A.label(LB_)
        ST.take(A, 2, 'mid')
        load_t()
        load_w()
        A('s_waitcnt vmcnt(18)')
        A.label(LE)
    fft2.mid_body(A, cfg, ST, S_Q, S_CL, pre, wait_t)
    A('s_waitcnt vmcnt(0)')
    A('s_barrier')
    ST.take(A, 6, 'mid')
    A(f's_cmp_lt_u32 s{S_W}, 4')
    A('s_cbranch_scc1 f_tailc')
    A(f's_sub_u32 s{S_W}, s{S_W}, 4')
    LS = A.newlabel('not2sig')
    A(f's_cmp_lg_u32 s{S_W}, 0')
    A(f's_cbranch_scc1 {LS}')
    A('v_lshlrev_b32 v21, 7, v0')
    A('v_mov_b32 v20, 1')
    A(f's_mov_b32 s42, {OFF_SY + L_T2 * 128}')
    A('s_mov_b64 exec, 0xffff')
    A(f'buffer_atomic_add v20, v21, {WS}, s42 offen sc1')
    A('s_mov_b64 exec, -1')
    A.label(LS)
    A('v_lshlrev_b32 v1, 4, v0')
    g2_loader_setup(A)
    A(f's_cmp_ge_u32 s{S_W}, 2')
    A('s_cbranch_scc1 f_midb')
    t2_poll_issue(A)
    A('s_branch f_taila')
    A.label('f_midb')
    Q = VQ(A)
    for k in range(4):
        g2_issue(A, Q, k)
    A('s_branch f_tailb')
    A.label('f_exit')
    A('s_endpgm')
    return (cfg.get('name', 'fused_kernel'), A, 192, 256, 512, 163840)
```

```python
from asmlib import *
from model import OFF_XN, OFF_T, OFF_T2, OFF_S, OFF_H
from gemm import make_srd, KA_X, KA_W2, KA_OUT, KA_WS
MB = 1 << 20
OFF_EX = 40 * MB
OFF_SY = 32 * MB


def fmap(A, L_EXIT):
    A('s_cmp_ge_u32 s2, 256')
    A(f's_cbranch_scc1 {L_EXIT}')
    A('s_and_b32 s5, s2, 7')
    A('s_lshr_b32 s6, s2, 3')
    A('s_lshr_b32 s3, s5, 1')
    A('s_lshl_b32 s3, s3, 2')
    A('s_lshr_b32 s7, s6, 3')
    A('s_add_u32 s3, s3, s7')
    A('s_and_b32 s4, s6, 7')
    A('s_lshl_b32 s4, s4, 1')
    A('s_and_b32 s7, s5, 1')
    A('s_add_u32 s4, s4, s7')


def body(A, cfg):
    NST = cfg.get('nst2', 4)
    BOFF = NST * 16384
    NSTEPS = 28
    S_W = 5
    S_WS, S_W2, S_B2, S_OUT, S_DBG, S_X = 6, 8, 10, 12, 14, 36
    SRD_A, SRD_B, SRD_C, SRD_D = 16, 20, 24, 40
    L_LOAD = A.newlabel('g2_loader')
    ST = Stamps(cfg.get('stamp'), 0)
    ST.take(A, 0)
    A(f's_load_dwordx2 s[{S_WS}:{S_WS + 1}], s[0:1], {KA_WS}')
    A(f's_load_dwordx4 s[{S_W2}:{S_W2 + 3}], s[0:1], {KA_W2}')
    A(f's_load_dwordx4 s[{S_OUT}:{S_OUT + 3}], s[0:1], {KA_OUT}')
    A(f's_load_dwordx2 s[{S_X}:{S_X + 1}], s[0:1], {KA_X}')
    A('v_lshrrev_b32 v1, 6, v0')
    A('v_and_b32 v0, 63, v0')
    A(f'v_readfirstlane_b32 s{S_W}, v1')
    A(f's_mov_b32 s46, {-(NST - 1) * 16384 & 0xffffffff:#x}')
    A('s_and_b32 s47, s4, 1')
    A('s_lshr_b32 s48, s4, 1')
    A(f's_cmp_ge_u32 s{S_W}, 4')
    A(f's_cbranch_scc1 {L_LOAD}')
    vL, vX = 64, 65
    vW = 66
    vO, vS, vE = 70, 71, 72
    vT = 74
    vXD, vSD = 96, 112
    FR = 128
    A(f'v_mov_b32 v{vL}, v0')
    A(f's_lshr_b32 s28, s{S_W}, 1')
    A(f's_and_b32 s29, s{S_W}, 1')
    A(f'v_lshrrev_b32 v{vT}, 4, v{vL}')
    A(f'v_lshlrev_b32 v{vT + 1}, 3, v{vT}')
    A(f's_lshl_b32 s30, s4, 7')
    A(f's_lshl_b32 s31, s29, 6')
    A(f's_add_u32 s30, s30, s31')
    A('s_waitcnt lgkmcnt(0)')
    make_srd(A, SRD_B, S_B2, 1024 * 2)
    for nt in range(2):
        A(f'buffer_load_dwordx2 v[{vT + 2 + 2 * nt}:{vT + 3 + 2 * nt}], v{vT + 1}, s[{SRD_B}:{SRD_B + 3}], s30 offen offset:{nt * 32}')
    make_srd(A, SRD_A, S_X, 4 << 20)
    make_srd(A, SRD_C, S_OUT, 4 << 20)
    make_srd(A, SRD_D, S_WS, 64 << 20)
    t0 = vT + 8
    A(f'v_and_b32 v{t0}, 1, v{vT}')
    A(f'v_lshlrev_b32 v{t0}, 5, v{t0}')
    A(f'v_lshrrev_b32 v{t0 + 1}, 1, v{vT}')
    A(f'v_lshl_add_u32 v{t0}, v{t0 + 1}, 4, v{t0}')
    A(f'v_add_u32 v{t0}, s30, v{t0}')
    A(f'v_and_b32 v{t0 + 1}, 7, v{vL}')
    A(f'v_lshlrev_b32 v{t0 + 1}, 8, v{t0 + 1}')
    A(f'v_bfe_u32 v{t0 + 2}, v{vL}, 3, 1')
    A(f'v_add_u32 v{t0 + 1}, v{t0 + 1}, v{t0 + 2}')
    A(f's_lshl_b32 s31, s3, 4')
    A(f's_lshl_b32 s32, s28, 3')
    A(f's_add_u32 s31, s31, s32')
    A(f'v_add_u32 v{t0 + 1}, s31, v{t0 + 1}')
    A(f'v_lshl_add_u32 v{vO}, v{t0 + 1}, 11, v{t0}')
    A(f'v_and_b32 v{t0 + 1}, 15, v{vL}')
    A(f's_lshl_b32 s31, s31, 3')
    A(f'v_add_u32 v{t0 + 1}, s31, v{t0 + 1}')
    A(f'v_lshl_add_u32 v{vS}, v{t0 + 1}, 11, v{t0}')
    for mt in range(4):
        A(f's_mov_b32 s31, {mt * 4096}')
        A(f'buffer_load_dwordx4 v[{vXD + 4 * mt}:{vXD + 4 * mt + 3}], v{vO}, s[{SRD_A}:{SRD_A + 3}], s31 offen')
    for mt in range(4):
        A(f's_mov_b32 s33, {OFF_S + mt * 32768}')
        A(f'buffer_load_dwordx4 v[{vSD + 4 * mt}:{vSD + 4 * mt + 3}], v{vS}, s[{SRD_D}:{SRD_D + 3}], s33 offen')
    A(f'v_lshlrev_b32 v{vE}, 4, v{vL}')
    A(f's_lshl_b32 s31, s28, 13')
    A(f'v_add_u32 v{vX}, s31, v{vE}')
    A(f'v_bfe_u32 v{t0}, v{vL}, 2, 2')
    A(f'v_lshl_add_u32 v{t0}, v{vT}, 2, v{t0}')
    A(f'v_and_b32 v{t0 + 1}, 7, v{t0}')
    A(f'v_lshlrev_b32 v{t0}, 8, v{t0}')
    A(f'v_and_b32 v{t0 + 2}, 3, v{vL}')
    A(f'v_lshl_add_u32 v{t0}, v{t0 + 2}, 3, v{t0}')
    A(f'v_add_u32 v{t0}, {BOFF}, v{t0}')
    A(f's_lshl_b32 s31, s29, 1')
    A(f's_lshl_b32 s32, s47, 2')
    A(f's_add_u32 s31, s31, s32')
    for nt in range(4):
        A(f's_xor_b32 s32, s31, {(nt & 1) | ((nt >> 1) << 2)}')
        A(f'v_xor_b32 v{t0 + 2}, s32, v{t0 + 1}')
        A(f'v_lshl_add_u32 v{vW + nt}, v{t0 + 2}, 5, v{t0}')
    A(f's_lshl_b32 s38, s3, 4')
    A(f's_add_u32 s38, s38, s4')
    A(f's_xor_b32 s39, s38, 1')
    A(f's_lshl_b32 s50, s38, 7')
    A(f's_lshl_b32 s51, s39, 7')
    A(f's_add_u32 s50, s50, {OFF_SY}')
    A(f's_add_u32 s51, s51, {OFF_SY}')
    A(f's_lshl_b32 s38, s38, 15')
    A(f's_lshl_b32 s39, s39, 15')
    A(f's_lshl_b32 s31, s{S_W}, 13')
    A(f's_add_u32 s31, s31, {OFF_EX}')
    A(f's_add_u32 s38, s38, s31')
    A(f's_add_u32 s39, s39, s31')
    A(f's_waitcnt vmcnt(8)')
    for nt in range(2):
        b = vT + 2 + 2 * nt
        base = (nt * 4) * 4
        A(f'v_lshlrev_b32 v{base}, 16, v{b}')
        A(f'v_and_b32 v{base + 1}, 0xffff0000, v{b}')
        A(f'v_lshlrev_b32 v{base + 2}, 16, v{b + 1}')
        A(f'v_and_b32 v{base + 3}, 0xffff0000, v{b + 1}')
        for mt in range(1, 4):
            for r in range(0, 4, 2):
                A(f'v_pk_mov_b32 v[{base + mt * 4 + r}:{base + mt * 4 + r + 1}], v[{base + r}:{base + r + 1}], v[{base + r}:{base + r + 1}] op_sel:[0,1]')
    for r in range(32, 64):
        A(f'v_mov_b32 v{r}, 0')

    def reads(st, kb):
        w, x = [], []
        for nt in range(4):
            for t in range(2):
                d = FR + 32 * st + nt * 4 + 2 * t
                w.append(f'ds_read_b64_tr_b16 v[{d}:{d + 1}], v{vW + nt} offset:{kb * 8192 + t * 4096}')
        for mt in range(4):
            d = FR + 32 * st + 16 + mt * 4
            x.append(f'ds_read_b128 v[{d}:{d + 3}], v{vX} offset:{(mt * 2 + kb) * 1024}')
        return w + x

    def substep(st, rd, extra):
        rd = list(rd)
        extra = list(extra)
        for mt in range(4):
            for nt in (range(4) if mt % 2 == 0 else range(3, -1, -1)):
                c = (nt * 4 + mt) * 4
                w = FR + 32 * st + nt * 4
                x = FR + 32 * st + 16 + mt * 4
                if not cfg.get('nomfma'):
                    A(f'v_mfma_f32_16x16x32_bf16 v[{c}:{c + 3}], v[{w}:{w + 3}], v[{x}:{x + 3}], v[{c}:{c + 3}]')
                if rd:
                    A(rd.pop(0))
                else:
                    for _ in range(3):
                        if extra:
                            A(extra.pop(0))
        for e in extra:
            A(e)

    A('s_mov_b32 s30, 0')
    A('s_mov_b32 s31, 0')
    A('s_barrier')
    ST.take(A, 1)
    for ins in reads(0, 0):
        A(ins)
    A('s_waitcnt lgkmcnt(0)')
    L = A.newlabel('g2_loop')
    A.label(L)
    upd = [f's_add_u32 s31, s31, 1', f's_cmp_eq_u32 s31, {NST}',
           f's_cselect_b32 s32, s46, 16384', f's_cselect_b32 s31, 0, s31',
           f'v_add_u32 v{vX}, s32, v{vX}'] + [f'v_add_u32 v{vW + nt}, s32, v{vW + nt}' for nt in range(4)]
    substep(0, reads(1, 1), upd)
    A('s_waitcnt lgkmcnt(0)')
    A('s_barrier')
    substep(1, reads(0, 0), ['s_add_u32 s30, s30, 1', f's_cmp_lt_u32 s30, {NSTEPS}'])
    A('s_waitcnt lgkmcnt(0)')
    A(f's_cbranch_scc1 {L}')
    ST.take(A, 2)
    for q in range(8):
        if q == 4:
            A('s_add_u32 s38, s38, 4096')
        A(f'buffer_store_dwordx4 v[{32 + 4 * q}:{35 + 4 * q}], v{vE}, s[{SRD_D}:{SRD_D + 3}], s38 offen offset:{(q & 3) * 1024} sc1')
    A('s_waitcnt vmcnt(0)')
    ST.take(A, 3)
    A(f'v_mov_b32 v{vT}, 1')
    A(f's_lshl_b32 s31, s{S_W}, 2')
    A(f'v_mov_b32 v{vT + 1}, s31')
    A('s_mov_b64 exec, 1')
    A(f'buffer_store_dword v{vT}, v{vT + 1}, s[{SRD_D}:{SRD_D + 3}], s50 offen sc1')
    LP = A.newlabel('poll')
    A('s_mov_b32 s34, 0')
    A.label(LP)
    A(f'buffer_load_dword v{vT + 2}, v{vT + 1}, s[{SRD_D}:{SRD_D + 3}], s51 offen sc1')
    A('s_waitcnt vmcnt(0)')
    A(f'v_readfirstlane_b32 s33, v{vT + 2}')
    A('s_add_u32 s34, s34, 1')
    A(f's_cmp_ge_u32 s34, {1 << 16}')
    A(f's_cselect_b32 s33, 1, s33')
    A(f's_cmp_lg_u32 s33, 1')
    A(f's_cbranch_scc1 {LP}')
    A('s_mov_b64 exec, -1')
    ST.take(A, 4)
    for q in range(8):
        if q == 4:
            A('s_add_u32 s39, s39, 4096')
        A(f'buffer_load_dwordx4 v[{32 + 4 * q}:{35 + 4 * q}], v{vE}, s[{SRD_D}:{SRD_D + 3}], s39 offen offset:{(q & 3) * 1024} sc1')
    A(f's_mov_b32 s44, 0xbfb8aa3b')
    A(f's_mov_b32 s45, 0xbfb8aa3b')
    A(f's_mov_b32 s35, 0xffff0000')
    A('s_waitcnt vmcnt(0)')
    ST.take(A, 5)
    for r in range(0, 32, 2):
        A(f'v_pk_add_f32 v[{r}:{r + 1}], v[{r}:{r + 1}], v[{r + 32}:{r + 33}]')
    E = FR
    for mt in range(4):
        c0 = mt * 4
        c1 = 16 + mt * 4
        for r in range(4):
            A(f'v_permlane16_swap_b32 v{c0 + r}, v{c1 + r}')
        vals = [c0, c0 + 2, c1, c1 + 2]
        e = E + (mt & 1) * 24
        for q in range(4):
            A(f'v_pk_mul_f32 v[{e + 2 * q}:{e + 2 * q + 1}], v[{vals[q]}:{vals[q] + 1}], s[44:45]')
        for q in range(8):
            A(f'v_exp_f32 v{e + q}, v{e + q}')
        for q in range(4):
            A(f'v_lshlrev_b32 v{e + 8 + 2 * q}, 16, v{vSD + 4 * mt + q}')
            A(f'v_and_b32 v{e + 9 + 2 * q}, s35, v{vSD + 4 * mt + q}')
        for q in range(4):
            A(f'v_pk_add_f32 v[{e + 2 * q}:{e + 2 * q + 1}], v[{e + 2 * q}:{e + 2 * q + 1}], 1.0 op_sel_hi:[1,0]')
        for q in range(8):
            A(f'v_rcp_f32 v{e + q}, v{e + q}')
        for q in range(4):
            A(f'v_pk_mul_f32 v[{e + 8 + 2 * q}:{e + 9 + 2 * q}], v[{e + 8 + 2 * q}:{e + 9 + 2 * q}], v[{vals[q]}:{vals[q] + 1}]')
        for q in range(4):
            A(f'v_lshlrev_b32 v{e + 16 + 2 * q}, 16, v{vXD + 4 * mt + q}')
            A(f'v_and_b32 v{e + 17 + 2 * q}, s35, v{vXD + 4 * mt + q}')
        for q in range(4):
            A(f'v_pk_fma_f32 v[{e + 2 * q}:{e + 2 * q + 1}], v[{e + 2 * q}:{e + 2 * q + 1}], v[{e + 8 + 2 * q}:{e + 9 + 2 * q}], v[{e + 16 + 2 * q}:{e + 17 + 2 * q}]')
        for q in range(4):
            A(f'v_cvt_pk_bf16_f32 v{vXD + 4 * mt + q}, v{e + 2 * q}, v{e + 2 * q + 1}')
        A(f's_mov_b32 s31, {mt * 4096}')
        A(f'buffer_store_dwordx4 v[{vXD + 4 * mt}:{vXD + 4 * mt + 3}], v{vO}, s[{SRD_C}:{SRD_C + 3}], s31 offen {cfg.get("ostore", "")}')
    ST.take(A, 6)
    ST.flush(A, [0, 1, 2, 3, 4, 5, 6, 7], S_WS, S_W)
    A('s_endpgm')

    A.label(L_LOAD)
    lf = cfg.get('lflag', '')
    A(f's_sub_u32 s{S_W}, s{S_W}, 4')
    vA0, vA1, vB = 2, 3, 4
    A('v_lshlrev_b32 v1, 4, v0')
    A(f's_lshl_b32 s38, s3, 3')
    A(f's_lshl_b32 s39, s{S_W}, 1')
    A(f's_add_u32 s38, s38, s39')
    A(f's_mul_i32 s38, s38, {112 * 1024}')
    A(f's_lshl_b32 s39, s47, 13')
    A(f's_add_u32 s38, s38, s39')
    A(f'v_add_u32 v{vA0}, s38, v1')
    A(f'v_add_u32 v{vA1}, {112 * 1024 - 2048}, v{vA0}')
    A('v_lshrrev_b32 v12, 4, v0')
    A('v_and_b32 v13, 15, v0')
    A(f's_lshl_b32 s38, s{S_W}, 15')
    A(f's_lshl_b32 s39, s48, 8')
    A(f's_add_u32 s38, s38, s39')
    A(f's_lshl_b32 s39, s47, 19')
    A(f's_add_u32 s38, s38, s39')
    for i in range(4):
        A(f'v_add_u32 v14, {4 * (i & 1)}, v12')
        A(f'v_lshlrev_b32 v14, 1, v14')
        A(f'v_xor_b32 v14, v14, v13')
        A(f'v_lshlrev_b32 v14, 4, v14')
        A(f'v_lshl_add_u32 v14, v12, 11, v14')
        A(f'v_add_u32 v14, s38, v14')
        A(f'v_add_u32 v{vB + i}, {4 * i * 2048 - i * 1024}, v14')
    A('s_waitcnt lgkmcnt(0)')
    make_srd(A, SRD_A, S_WS, 2048 * 3584 * 2, OFF_H)
    make_srd(A, SRD_B, S_W2, 1024 * 3584 * 2)
    A(f's_lshl_b32 s30, s{S_W}, 12')
    A(f's_add_u32 s31, s30, {BOFF}')

    def issue(step):
        blk, st = step >> 2, step & 3
        if cfg.get('same'):
            blk = blk % cfg['same']
        slot = step % NST
        A(f's_add_u32 m0, s30, {slot * 16384}')
        A(f's_mov_b32 s28, {(blk * 16 + st * 2) * 1024}')
        if cfg.get('noA'):
            A(f's_mov_b32 s49, {(((blk + 3) % 7) * 512 + st * 64) * 2048}')
        if cfg.get('noB'):
            A(f's_mov_b32 s49, {(((blk + 3) % 7) * 16 + st * 2) * 1024}')
        for i in range(4):
            va = vA0 if i < 2 else vA1
            if cfg.get('noA'):
                A(f'buffer_load_dwordx4 v{vB + i}, s[{SRD_B}:{SRD_B + 3}], s49 offen offset:{i * 1024} {lf} lds')
                continue
            A(f'buffer_load_dwordx4 v{va}, s[{SRD_A}:{SRD_A + 3}], s28 offen offset:{i * 1024} {lf} lds')
        A(f's_add_u32 m0, s31, {slot * 16384}')
        A(f's_mov_b32 s29, {(blk * 512 + st * 64) * 2048}')
        for i in range(4):
            if cfg.get('noB'):
                A(f'buffer_load_dwordx4 v{vA0 if i < 2 else vA1}, s[{SRD_A}:{SRD_A + 3}], s49 offen offset:{i * 1024} {lf} lds')
                continue
            A(f'buffer_load_dwordx4 v{vB + i}, s[{SRD_B}:{SRD_B + 3}], s29 offen offset:{i * 1024} {lf} lds')

    for k in range(NST):
        issue(k)
    A(f's_waitcnt vmcnt({8 * (NST - 1)})')
    A('s_barrier')
    for k in range(NSTEPS):
        rem = min(NSTEPS - 1, k + NST - 1) - (k + 1)
        if k + 1 < NSTEPS and not cfg.get('noload'):
            A(f's_waitcnt vmcnt({8 * max(rem, 0)})')
        A('s_barrier')
        if k + NST < NSTEPS and not cfg.get('noload'):
            issue(k + NST)
    A('s_endpgm')


def k_g2s(cfg):
    A = Asm()
    fmap(A, 'g2_exit')
    body(A, cfg)
    A.label('g2_exit')
    A('s_endpgm')
    return ('g2s_kernel', A, None, 256, 512, 32768 * cfg.get('nst2', 4))
```

```python
from asmlib import *
from gemm import make_srd
from model import OFF_T, OFF_T2, OFF_S, OFF_H, OFF_ST, OFF_WP, OFF_WC
from fft import fl, wave_reduce2, trig_pairs, XROW, P_OFF, VROW, GRP, XS_OFF, YS_OFF, MID_LDS

P_X, P_WR, P_WI, P_W1, P_B1, P_W2, P_B2 = 60, 62, 64, 68, 70, 72, 74
P_OUT, P_DBG, P_WS = 52, 54, 50
SRD_WS = 56
S_W = 5


FLG = 156 * 1024


def lds_sync(A, v0, v1, n):
    L0, L1 = A.newlabel('lsync'), A.newlabel('lsynced')
    A(f'v_mov_b32 v{v0}, {FLG}')
    A(f'v_mov_b32 v{v1}, 1')
    A('s_mov_b32 s28, 0')
    A('s_waitcnt lgkmcnt(0)')
    A('s_mov_b64 exec, 1')
    A(f'ds_add_rtn_u32 v{v1}, v{v0}, v{v1}')
    A('s_waitcnt lgkmcnt(0)')
    A(f'v_add_u32 v{v1}, 1, v{v1}')
    A.label(L0)
    A(f'v_readfirstlane_b32 s29, v{v1}')
    A(f's_cmp_ge_u32 s29, {n}')
    A(f's_cbranch_scc1 {L1}')
    A(f'ds_read_b32 v{v1}, v{v0}')
    A('s_add_u32 s28, s28, 1')
    A(f's_cmp_lt_u32 s28, {1 << 16}')
    A('s_waitcnt lgkmcnt(0)')
    A(f's_cbranch_scc1 {L0}')
    A.label(L1)
    A('s_mov_b64 exec, -1')


def ws_srd(A):
    make_srd(A, SRD_WS, P_WS, 48 << 20)


def p1_rows(A, cfg, ST, LB):
    ts = 'sc1'
    SRD_X, SRD_O = 16, SRD_WS
    S_X = P_X
    R = Alloc(1, 200)
    vL16 = R()
    CA = R(8, 4)
    SA = R(8, 4)
    CB = R(8, 4)
    SB_ = R(8, 4)
    TR = R(16, 2)
    TI = R(16, 2)
    M8 = R(2, 2)
    vA = R(8)
    XD = [R(8, 4), R(8, 4)]
    YR = [R(16, 4), R(16, 4)]
    YI = [R(16, 4), R(16, 4)]
    TM = [R(8, 4), R(8, 4)]
    XB = R(16, 4)
    tmp = TM[0]
    A(f'v_lshlrev_b32 v{vL16}, 4, v0')
    A(f's_lshl_b32 s28, s{S_W}, 8')
    A('s_add_u32 s28, s28, s2')
    A('s_lshl_b32 s28, s28, 11')
    A(f's_add_u32 s29, s28, {4 * 256 * 2048}')
    A('s_waitcnt lgkmcnt(0)')
    make_srd(A, SRD_X, S_X, 4 << 20)
    for z in range(2):
        A(f'buffer_load_dwordx4 v[{XD[z]}:{XD[z] + 3}], v{vL16}, s[{SRD_X}:{SRD_X + 3}], s{28 + z} offen')
        A(f'buffer_load_dwordx4 v[{XD[z] + 4}:{XD[z] + 7}], v{vL16}, s[{SRD_X}:{SRD_X + 3}], s{28 + z} offen offset:1024')
    A('s_barrier')
    ws_srd(A)

    vh, vc, vf, vb = YR[0], YR[0] + 1, YR[0] + 2, YR[0] + 3
    A(f'v_lshrrev_b32 v{vh}, 5, v0')
    A(f'v_and_b32 v{vc}, 31, v0')
    A(f'v_cvt_f32_u32 v{vh}, v{vh}')
    A(f'v_cvt_f32_u32 v{vf}, v{vc}')
    A(f'v_mul_f32 v{vf}, {fl(1 / 32)}, v{vf}')
    A(f'v_mul_f32 v{vb}, {fl(8.0)}, v{vh}')
    A(f'v_mul_f32 v{vb}, v{vb}, v{vf}')
    trig_pairs(A, CA, SA, lambda i, r: A(f'v_fmamk_f32 v{r}, v{vf}, {fl(16 * (i >> 3) + (i & 7))}, v{vb}'), 16, tmp, True)
    A(f'v_mul_f32 v{vf}, {fl(1 / 32)}, v{vf}')
    A(f'v_mul_f32 v{vb}, {fl(4.0)}, v{vh}')
    A(f'v_mul_f32 v{vb}, v{vb}, v{vf}')
    for i in range(16):
        t = tmp + (i & 1)
        A(f'v_fmamk_f32 v{t}, v{vf}, {fl(8 * (i >> 2) + (i & 3))}, v{vb}')
        A(f'v_cos_f32 v{TR + i}, v{t}')
        A(f'v_sin_f32 v{TI + i}, -v{t}')
    A(f'v_lshrrev_b32 v{vf}, 1, v{vc}')
    A(f'v_cvt_f32_u32 v{vf}, v{vf}')
    A(f'v_mul_f32 v{vf}, {fl(1 / 32)}, v{vf}')
    A(f'v_and_b32 v{vc}, 1, v{vc}')
    A(f'v_cvt_f32_u32 v{vc}, v{vc}')
    A(f'v_mul_f32 v{vb}, {fl(4.0)}, v{vh}')
    A(f'v_mul_f32 v{vb}, v{vb}, v{vf}')
    A(f'v_fmac_f32 v{vb}, {fl(0.25)}, v{vc}')
    trig_pairs(A, CB, SB_, lambda i, r: A(f'v_fmamk_f32 v{r}, v{vf}, {fl(16 * (i >> 3) + 8 * ((i >> 2) & 1) + (i & 3))}, v{vb}'), 16, tmp)
    A(f'v_bfe_u32 v{vf}, v0, 1, 3')
    A(f'v_cvt_f32_u32 v{vf}, v{vf}')
    A(f'v_lshrrev_b32 v{vh}, 4, v0')
    A(f'v_lshlrev_b32 v{vh}, 9, v{vh}')
    A(f'v_add_u32 v{vh}, s2, v{vh}')
    A(f'v_cvt_f32_u32 v{vh}, v{vh}')
    A(f'v_mul_f32 v{vh}, {fl(1 / 2048)}, v{vh}')
    A(f'v_mul_f32 v{vb}, v{vh}, v{vf}')
    A(f'v_fmac_f32 v{vb}, {fl(0.25)}, v{vc}')
    A(f'v_fmamk_f32 v{vh}, v{vf}, {fl(1 / 8)}, v{vb}')
    A(f'v_cos_f32 v{tmp}, v{vb}')
    A(f'v_sin_f32 v{tmp + 1}, v{vb}')
    A(f'v_cos_f32 v{tmp + 2}, v{vh}')
    A(f'v_sin_f32 v{tmp + 3}, v{vh}')
    A(f'v_cvt_pk_bf16_f32 v{M8}, v{tmp}, v{tmp + 1}')
    A(f'v_cvt_pk_bf16_f32 v{M8 + 1}, v{tmp + 2}, v{tmp + 3}')
    vWr, vTr, vPw, vPr, vXr, vXo, vTo = range(vA, vA + 7)
    A(f's_mul_i32 s29, s{S_W}, {XROW}')
    A(f's_add_u32 s29, s29, {LB}')
    A(f'v_add_u32 v{vWr}, s29, v{vL16}')
    A(f'v_lshrrev_b32 v{tmp}, 5, v0')
    A(f'v_lshlrev_b32 v{tmp}, 9, v{tmp}')
    A(f'v_bfe_u32 v{tmp + 1}, v0, 2, 2')
    A(f'v_lshl_add_u32 v{tmp}, v{tmp + 1}, 6, v{tmp}')
    A(f'v_bfe_u32 v{tmp + 1}, v0, 4, 1')
    A(f'v_lshl_add_u32 v{tmp}, v{tmp + 1}, 5, v{tmp}')
    A(f'v_and_b32 v{tmp + 1}, 3, v0')
    A(f'v_lshl_add_u32 v{tmp}, v{tmp + 1}, 3, v{tmp}')
    A(f'v_add_u32 v{vTr}, s29, v{tmp}')
    A(f's_lshl_b32 s29, s{S_W}, 11')
    A(f's_lshr_b32 s30, s{S_W}, 1')
    A(f's_lshl_b32 s30, s30, 3')
    A(f's_add_u32 s29, s29, s30')
    A(f's_add_u32 s29, s29, {P_OFF + LB}')
    A(f'v_and_b32 v{tmp}, 31, v0')
    A(f'v_lshrrev_b32 v{tmp + 1}, 5, v0')
    A(f'v_lshl_add_u32 v{tmp}, v{tmp + 1}, 6, v{tmp}')
    A(f'v_lshl_add_u32 v{vPw}, v{tmp}, 2, s29')
    A(f'v_lshrrev_b32 v{tmp}, 4, v0')
    A(f'v_lshlrev_b32 v{tmp + 1}, 12, v{tmp}')
    A(f'v_and_b32 v{tmp + 2}, 1, v{tmp}')
    A(f'v_lshl_add_u32 v{tmp + 1}, v{tmp + 2}, 3, v{tmp + 1}')
    A(f'v_lshrrev_b32 v{tmp + 2}, 1, v{tmp}')
    A(f'v_lshl_add_u32 v{tmp + 1}, v{tmp + 2}, 6, v{tmp + 1}')
    A(f'v_bfe_u32 v{tmp + 2}, v0, 2, 1')
    A(f'v_lshl_add_u32 v{tmp + 1}, v{tmp + 2}, 7, v{tmp + 1}')
    A(f'v_and_b32 v{tmp + 2}, 3, v0')
    A(f'v_lshl_add_u32 v{tmp + 1}, v{tmp + 2}, 4, v{tmp + 1}')
    A(f'v_bfe_u32 v{tmp + 2}, v0, 3, 1')
    A(f'v_lshl_add_u32 v{tmp + 1}, v{tmp + 2}, 2, v{tmp + 1}')
    A(f's_lshl_b32 s29, s{S_W}, 9')
    A(f's_add_u32 s29, s29, {P_OFF + LB}')
    A(f'v_add_u32 v{vPr}, s29, v{tmp + 1}')
    A(f's_lshl_b32 s36, s2, 3')
    A(f's_add_u32 s36, s36, s{S_W}')
    A(f's_lshl_b32 s36, s36, 3')
    A(f's_add_u32 s36, s36, {OFF_ST}')
    A(f'v_bfe_u32 v{tmp}, v0, 1, 3')
    A(f'v_lshlrev_b32 v{vTo}, 19, v{tmp}')
    A(f'v_lshrrev_b32 v{tmp}, 5, v0')
    A(f'v_lshl_add_u32 v{vTo}, v{tmp}, 6, v{vTo}')
    A(f'v_and_b32 v{tmp}, 1, v0')
    A(f'v_lshl_add_u32 v{vTo}, v{tmp}, 5, v{vTo}')
    A(f'v_bfe_u32 v{tmp}, v0, 4, 1')
    A(f'v_lshl_add_u32 v{vTo}, v{tmp}, 4, v{vTo}')
    A(f's_and_b32 s38, s2, 15')
    A(f's_lshl_b32 s38, s38, 4')
    A(f's_lshr_b32 s32, s2, 4')
    A(f's_add_u32 s38, s38, s32')
    A(f's_lshl_b32 s38, s38, 8')
    A(f's_lshl_b32 s32, s{S_W}, 17')
    A(f's_add_u32 s38, s38, s32')
    A(f's_add_u32 s38, s38, {OFF_T}')
    A(f's_add_u32 s39, s38, 65536')
    A(f's_mov_b32 s30, 0x3f803f80')
    A(f's_mov_b32 s31, 0xffff0000')
    for z in range(2):
        A(f'v_mov_b32 v{TM[z]}, 0')
        A(f'v_mov_b32 v{TM[z] + 1}, 0')
    ST.take(A, 1, 'p1')
    A('s_waitcnt vmcnt(0)')
    ST.take(A, 2, 'p1')

    def ln(z):
        A = Asm()
        vXD, U, tmp = XD[z], YR[z], TM[z]
        sa, sb = 40 + 2 * z, 41 + 2 * z
        s1_, s2_ = tmp, tmp + 1
        for i in range(8):
            A(f'v_dot2_f32_bf16 v{s1_}, v{vXD + i}, s30, v{s1_}')
            A(f'v_dot2_f32_bf16 v{s2_}, v{vXD + i}, v{vXD + i}, v{s2_}')
        wave_reduce2(A, s1_, s2_)
        for i in range(8):
            A(f'v_lshlrev_b32 v{U + 2 * i}, 16, v{vXD + i}')
            A(f'v_and_b32 v{U + 2 * i + 1}, s31, v{vXD + i}')
        A(f'v_readlane_b32 s{sa}, v{s1_}, 63')
        A(f'v_readlane_b32 s{sb}, v{s2_}, 63')
        mu, va = tmp + 2, tmp + 4
        A(f'v_mov_b32 v{mu}, {fl(1 / 1024)}')
        A(f'v_mul_f32 v{va}, s{sb}, v{mu}')
        A(f'v_mul_f32 v{mu}, s{sa}, v{mu}')
        A(f'v_fma_f32 v{va}, -v{mu}, v{mu}, v{va}')
        A(f'v_max_f32 v{va}, 0, v{va}')
        A(f'v_cvt_pk_bf16_f32 v{mu}, v{mu}, v{va}')
        A(f'v_and_b32 v{va}, s31, v{mu}')
        A(f'v_lshlrev_b32 v{mu}, 16, v{mu}')
        A(f'v_add_f32 v{va}, {fl(1e-5)}, v{va}')
        A(f'v_cvt_pk_bf16_f32 v{va}, v{va}, v{va}')
        A(f'v_and_b32 v{va}, s31, v{va}')
        A(f'v_sqrt_f32 v{va}, v{va}')
        for i in range(8):
            A(f'v_pk_add_f32 v[{U + 2 * i}:{U + 2 * i + 1}], v[{U + 2 * i}:{U + 2 * i + 1}], v[{mu}:{mu + 1}] op_sel_hi:[1,0] neg_lo:[0,1] neg_hi:[0,1]')
        A(f'v_cvt_pk_bf16_f32 v{va}, v{va}, v{va}')
        A(f'v_and_b32 v{va}, s31, v{va}')
        A(f'v_cvt_pk_bf16_f32 v{tmp + 6}, -v{mu}, v{va}')
        A(f'v_rcp_f32 v{va}, v{va}')
        for i in range(8):
            A(f'v_cvt_pk_bf16_f32 v{vXD + i}, v{U + 2 * i}, v{U + 2 * i + 1}')
        for i in range(8):
            A(f'v_lshlrev_b32 v{U + 2 * i}, 16, v{vXD + i}')
            A(f'v_and_b32 v{U + 2 * i + 1}, s31, v{vXD + i}')
        for i in range(8):
            A(f'v_pk_mul_f32 v[{U + 2 * i}:{U + 2 * i + 1}], v[{U + 2 * i}:{U + 2 * i + 1}], v[{va}:{va + 1}] op_sel_hi:[1,0]')
        A(f'v_mul_f32 v{tmp + 7}, v{va}, v{va}')
        for i in range(8):
            A(f'v_cvt_pk_bf16_f32 v{vXD + i}, v{U + 2 * i}, v{U + 2 * i + 1}')
            if i == 3:
                A(f'ds_write_b128 v{vWr}, v[{vXD}:{vXD + 3}] offset:{z * 4 * XROW}')
        A(f'ds_write_b128 v{vWr}, v[{vXD + 4}:{vXD + 7}] offset:{1024 + z * 4 * XROW}')
        return A
    merge(A, [ln(0), ln(1)])
    A('s_waitcnt lgkmcnt(0)')
    for z in range(2):
        for kk in range(2):
            for t in range(2):
                d = XD[z] + 4 * kk + 2 * t
                A(f'ds_read_b64_tr_b16 v[{d}:{d + 1}], v{vTr} offset:{kk * 1024 + t * 256 + z * 4 * XROW}')
    A('s_mov_b64 exec, 1')
    for z in range(2):
        A(f'buffer_store_dwordx2 v[{TM[z] + 6}:{TM[z] + 7}], off, s[{SRD_O}:{SRD_O + 3}], s36 offset:{32 * z} sc1')
    A('s_mov_b64 exec, -1')
    for z in range(2):
        A(f's_waitcnt lgkmcnt({4 - 4 * z})')
        for kk in range(2):
            for (Y, C) in ((YR[z], CA), (YI[z], SA)):
                A(f'v_mfma_f32_32x32x16_bf16 v[{Y}:{Y + 15}], v[{XD[z] + 4 * kk}:{XD[z] + 4 * kk + 3}], v[{C + 4 * kk}:{C + 4 * kk + 3}], ' + ('0' if kk == 0 else f'v[{Y}:{Y + 15}]'))
    ST.take(A, 3, 'p1')
    A(f'v_cmp_eq_u32 vcc, 0, v0')

    def tw(z):
        A = Asm()
        tmp = TM[z]
        sa, sb = 40 + 2 * z, 41 + 2 * z
        ny = tmp + 2
        Yr, Yi = YR[z], YI[z]
        A(f'v_pk_add_f32 v[{ny}:{ny + 1}], v[{Yr}:{Yr + 1}], v[{Yr + 2}:{Yr + 3}]')
        for q in range(2, 8):
            A(f'v_pk_add_f32 v[{ny}:{ny + 1}], v[{ny}:{ny + 1}], v[{Yr + 2 * q}:{Yr + 2 * q + 1}]')
        A(f'v_sub_f32 v{ny}, v{ny}, v{ny + 1}')
        PR, PI = XD[z], XB + 8 * z
        for q in range(8):
            yr, yi, tr, ti = (f'v[{x + 2 * q}:{x + 2 * q + 1}]' for x in (Yr, Yi, TR, TI))
            a0 = tmp + 4 if q & 1 else tmp
            t0 = f'v[{a0}:{a0 + 1}]'
            A(f'v_pk_mul_f32 {t0}, {yr}, {tr}')
            A(f'v_pk_mul_f32 {yr}, {yr}, {ti}')
            A(f'v_pk_fma_f32 {t0}, {yi}, {ti}, {t0} neg_lo:[1,0,0] neg_hi:[1,0,0]')
            A(f'v_pk_fma_f32 {yr}, {yi}, {tr}, {yr}')
            A(f'v_cvt_pk_bf16_f32 v{PR + q}, v{a0}, v{a0 + 1}')
            A(f'v_cvt_pk_bf16_f32 v{PI + q}, v{Yr + 2 * q}, v{Yr + 2 * q + 1}')
            if q == 0:
                A(f'v_readlane_b32 s{sa}, v{ny}, 0')
                A(f'v_readlane_b32 s{sb}, v{ny}, 32')
        X = Yi
        seq = [(CB, PR, 0), (SB_, PI, 0), (CB, PR, 1), (SB_, PI, 1)]
        for n, (c, d, kk) in enumerate(seq):
            A(f'v_mfma_f32_32x32x16_bf16 v[{X}:{X + 15}], v[{c + 4 * kk}:{c + 4 * kk + 3}], v[{d + 4 * kk}:{d + 4 * kk + 3}], ' + ('0' if n == 0 else f'v[{X}:{X + 15}]'))
        A(f'v_mov_b32 v{ny}, s{sa}')
        A(f'v_add_f32 v{ny}, s{sb}, v{ny}')
        return A

    def pw(z):
        A = Asm()
        X, Yr, ny = YI[z], YR[z], TM[z] + 2
        A(f'v_cndmask_b32 v{X + 1}, v{X + 1}, v{ny}, vcc')
        for q in range(8):
            A(f'v_cvt_pk_bf16_f32 v{Yr + q}, v{X + 2 * q}, v{X + 2 * q + 1}')
            A(f'ds_write_b32 v{vPw}, v{Yr + q} offset:{(q >> 1) * 512 + (q & 1) * 128 + z * (8192 + 64)}')
        return A
    t0, t1 = tw(0), tw(1)
    A.lines += t0.lines
    A.lines += t1.lines
    A.lines += pw(0).lines
    A.lines += pw(1).lines
    for t in range(1, 4):
        A(f'v_add_u32 v{tmp + t}, {(16 * (t & 1) + 2 * (t >> 1)) * 4}, v{vPr}')
    lds_sync(A, TM[1], TM[1] + 1, 4)
    ST.take(A, 4, 'p1')
    for z in range(2):
        for t in range(4):
            A(f'ds_read2st64_b32 v[{XD[z] + 2 * t}:{XD[z] + 2 * t + 1}], v{tmp + t if t else vPr} offset0:{z} offset1:{8 + z}')
    for z in range(2):
        for t in range(4):
            A(f's_waitcnt lgkmcnt({7 - 4 * z - t})')
            A(f'v_mfma_f32_16x16x16_bf16 v[{YI[z] + 4 * t}:{YI[z] + 4 * t + 3}], v[{XD[z] + 2 * t}:{XD[z] + 2 * t + 1}], v[{M8}:{M8 + 1}], 0')
    for z in range(2):
        for t in range(4):
            A(f'v_cvt_pk_bf16_f32 v{YR[z] + 2 * t}, v{YI[z] + 4 * t}, v{YI[z] + 4 * t + 1}')
            A(f'v_cvt_pk_bf16_f32 v{YR[z] + 2 * t + 1}, v{YI[z] + 4 * t + 2}, v{YI[z] + 4 * t + 3}')
            if t & 1:
                A(f'buffer_store_dwordx4 v[{YR[z] + 2 * t - 2}:{YR[z] + 2 * t + 1}], v{vTo}, s[{SRD_O}:{SRD_O + 3}], s{38 + z} offen offset:{(t >> 1) * 128} {ts}')
    ST.take(A, 5, 'p1')


def wc_load(A, va, sa=8, sb=12):
    A('s_mul_i32 s28, s2, 8208')
    A(f'v_bfe_u32 v{va + 1}, v0, 1, 3')
    A(f'v_and_b32 v{va + 2}, 16, v0')
    A(f'v_add_u32 v{va + 1}, v{va + 1}, v{va + 2}')
    A(f'v_mul_u32_u24 v{va + 1}, 1026, v{va + 1}')
    A(f'v_and_b32 v{va + 2}, 1, v0')
    A(f'v_lshl_add_u32 v{va + 1}, v{va + 2}, 10, v{va + 1}')
    A('s_and_b32 s29, s2, 15')
    A('s_cmp_ge_u32 s29, 12')
    A('s_cselect_b32 s31, -1, 0xffff')
    A('s_mov_b32 exec_hi, 0')
    A('s_mov_b32 exec_lo, s31')
    A(f'buffer_load_ushort v{va + 2}, v{va + 1}, s[{sa}:{sa + 3}], s28 offen')
    A(f'buffer_load_ushort v{va + 3}, v{va + 1}, s[{sb}:{sb + 3}], s28 offen')
    A('s_mov_b64 exec, -1')


def wc_store(A, va):
    W_ = f's[{SRD_WS}:{SRD_WS + 3}]'
    A(f'v_bfe_u32 v{va}, v0, 1, 3')
    A(f'v_lshlrev_b32 v{va}, 11, v{va}')
    A(f'v_and_b32 v{va + 1}, 1, v0')
    A(f'v_lshl_add_u32 v{va}, v{va + 1}, 2, v{va}')
    A(f'v_and_b32 v{va + 1}, 16, v0')
    A(f'v_add_u32 v{va}, v{va}, v{va + 1}')
    A('s_lshl_b32 s28, s2, 3')
    A(f's_add_u32 s28, s28, {OFF_WC}')
    A(f'v_lshl_or_b32 v{va + 2}, v{va + 3}, 16, v{va + 2}')
    A('s_mov_b32 exec_hi, 0')
    A('s_mov_b32 exec_lo, s31')
    A(f'buffer_store_dword v{va + 2}, v{va}, {W_}, s28 offen sc1')
    A('s_mov_b64 exec, -1')


def mid_body(A, cfg, ST, S_Q, S_CL, wait_t):
    t2s = 'sc1'
    S_OM, S_K1A, S_GB = 6, 7, 12
    SRD_T = SRD_WS
    A(f's_and_b32 s{S_OM}, s{S_W}, 3')
    A(f's_sub_u32 s28, 8, s{S_CL}')
    A(f's_cmp_eq_u32 s{S_CL}, 0')
    A(f's_cselect_b32 s28, 4, s28')
    A(f's_cmp_ge_u32 s{S_W}, 4')
    A(f's_cselect_b32 s{S_K1A}, s28, s{S_CL}')
    A(f's_cselect_b32 s{S_GB}, {GRP}, 0')
    R = Alloc(1, 192)
    vg, vi = R(), R()
    vT2 = R()
    vRd = R(4)
    vP = R(8)
    vR2, vW2 = R(2), R(2)
    vk, vkp = R(), R()
    SW = R(8, 2)
    B1R, B1I, B4R, B4I = R(4, 4), R(4, 4), R(4, 4), R(4, 4)
    WR = R(64, 4)
    FR = [R(16, 4), R(16, 4)]
    AC = R(32, 4)
    tmp = R(16, 4)
    A2, B3 = 0, 32
    A(f'v_lshrrev_b32 v{vg}, 4, v0')
    A(f'v_and_b32 v{vi}, 15, v0')
    A(f'v_bfe_u32 v{tmp + 1}, v0, 2, 2')
    A(f'v_xor_b32 v{tmp + 1}, v{tmp + 1}, v{vg}')
    A(f'v_lshlrev_b32 v{tmp + 1}, 6, v{tmp + 1}')
    A(f'v_lshl_add_u32 v{tmp + 1}, v{vg}, 8, v{tmp + 1}')
    A(f'v_and_b32 v{tmp + 2}, 3, v0')
    A(f'v_lshl_add_u32 v{tmp + 1}, v{tmp + 2}, 4, v{tmp + 1}')
    A(f's_lshl_b32 s29, s{S_K1A}, 19')
    A(f's_lshl_b32 s30, s{S_Q}, 16')
    A(f's_add_u32 s29, s29, s30')
    A(f's_lshl_b32 s30, s{S_OM}, 14')
    A(f's_add_u32 s29, s29, s30')
    A(f's_add_u32 s29, s29, {OFF_T}')
    A(f's_mul_i32 s30, s{S_OM}, {4 * VROW}')
    A(f's_add_u32 s30, s30, s{S_GB}')
    SRD_R, SRD_I = 16, 24
    WU = 9216
    make_srd(A, SRD_R, P_WR, 2048 * 513 * 2)
    make_srd(A, SRD_I, P_WI, 2048 * 513 * 2)

    def load_t():
        for vv in range(4):
            A(f's_add_u32 m0, s30, {vv * VROW}')
            A(f's_add_u32 s31, s29, {vv * 4096}')
            for i in range(4):
                A(f'buffer_load_dwordx4 v{tmp + 1}, s[{SRD_T}:{SRD_T + 3}], s31 offen offset:{i * 1024} sc1 lds')

    vD, vRa = FR[0], FR[1]
    A(f's_mul_i32 s34, s{S_OM}, {3 * WU}')
    A(f's_mul_i32 s37, s{S_OM}, {4 * 8208}')
    A(f's_lshl_b32 s28, s{S_Q}, 7')
    A(f's_add_u32 s37, s37, s28')
    A(f's_lshl_b32 s28, s{S_CL}, 10')
    A(f's_add_u32 s38, s37, s28')
    A(f's_lshl_b32 s28, s{S_K1A}, 10')
    A(f's_add_u32 s37, s37, s28')

    def stage(srd, soff, unit):
        for n in range(9):
            A(f's_add_u32 m0, s34, {unit * WU + n * 1024}')
            A(f'buffer_load_dwordx4 v{vD + n}, s[{srd}:{srd + 3}], s{soff} offen lds')
    t0, t1, t2 = vD + 10, vD + 11, vD + 12
    for n in range(9):
        A(f'v_add_u32 v{t0}, {n}, v0')
        A(f'v_mul_u32_u24 v{t1}, 57, v{t0}')
        A(f'v_lshrrev_b32 v{t1}, 9, v{t1}')
        A(f'v_mul_u32_u24 v{t2}, 9, v{t1}')
        A(f'v_sub_u32 v{t0}, v{t0}, v{t2}')
        A(f'v_add_u32 v{t1}, {7 * n}, v{t1}')
        A(f'v_and_b32 v{t2}, 0x33, v{t1}')
        A(f'v_lshlrev_b32 v{vD + n}, 2, v{t2}')
        A(f'v_and_b32 v{t2}, 3, v{t2}')
        A(f'v_mad_u32_u24 v{t2}, v{t2}, 12, v{vD + n}')
        A(f'v_bfe_u32 v{t1}, v{t1}, 2, 2')
        A(f'v_add_u32 v{t2}, v{t2}, v{t1}')
        A(f'v_mul_u32_u24 v{t2}, 8208, v{t2}')
        A(f'v_lshl_add_u32 v{vD + n}, v{t0}, 4, v{t2}')

    def stage_first():
        stage(SRD_R, 37, 0)
        stage(SRD_I, 37, 1)
        stage(SRD_R, 38, 2)
    if cfg.get('wst', 1) == 0:
        LH = A.newlabel('mid_nostage')
        A(f's_cmp_lt_u32 s{S_W}, 4')
        A(f's_cbranch_scc1 {LH}')
        stage_first()
        A.label(LH)
    A(f's_cmp_lt_u32 s{S_W}, 4')
    A(f's_cselect_b32 s28, {2 * WU}, 0')
    A(f's_cselect_b32 s31, 0, {WU}')
    A(f's_lshl_b32 s39, s{S_K1A}, 1')
    A(f's_and_b32 s39, s39, 12')
    A(f's_add_u32 s39, s39, s34')
    A(f's_add_u32 s28, s28, s39')
    A(f's_add_u32 s31, s31, s39')
    A(f's_and_b32 s39, s{S_K1A}, 1')
    A(f's_lshl_b32 s39, s39, 4')
    A(f'v_mul_u32_u24 v{vRa}, 2304, v{vg}')
    A(f'v_lshl_add_u32 v{vRa}, v{vi}, 3, v{vRa}')
    A(f'v_add_u32 v{vRa + 1}, s31, v{vRa}')
    A(f'v_add_u32 v{vRa}, s28, v{vRa}')
    for z in range(2):
        A(f'v_add_u32 v{vRa + 2 + z}, 1152, v{vRa + z}')

    def read_w():
        for n in range(16):
            for z in range(2):
                d = WR + 4 * n + 2 * z
                A(f'ds_read2_b32 v[{d}:{d + 1}], v{vRa + z + 2 * (n >> 3)} offset0:{(n & 7) * 36} offset1:{(n & 7) * 36 + 1}')
                A(f'ds_read_b32 v{AC + 2 * n + z}, v{vRa + z} offset:{n * 144 + 8}')
            if n >= 3:
                fix_w(n - 3, 12)
        for n in range(13, 16):
            fix_w(n, 4 * (15 - n))

    def fix_w(n, cnt):
        A(f's_waitcnt lgkmcnt({cnt})')
        for z in range(2):
            d = WR + 4 * n + 2 * z
            A(f'v_alignbit_b32 v{d}, v{d + 1}, v{d}, s39')
            A(f'v_alignbit_b32 v{d + 1}, v{AC + 2 * n + z}, v{d + 1}, s39')
    wl = []

    c0, c1, c2, c3 = AC, AC + 1, AC + 2, AC + 3
    fi, fg = AC + 4, AC + 5
    A(f'v_cvt_f32_u32 v{fi}, v{vi}')
    A(f'v_cvt_f32_u32 v{fg}, v{vg}')
    cnt = [0]

    def quad(angf, dst):
        o = 10 + 4 * (cnt[0] & 3)
        cnt[0] += 1
        C, S_, T = AC + o, AC + o + 1, AC + o + 2
        angf(T)
        A(f'v_cos_f32 v{C}, v{T}')
        A(f'v_sin_f32 v{S_}, v{T}')
        if wl:
            for l in wl.pop(0):
                A(l)
        pend.append((C, S_, T, dst))
        if len(pend) > 1:
            fin(pend.pop(0))
    pend = []

    def fin(p):
        C, S_, T, dst = p
        m = {'c': f'v{C}', 's': f'v{S_}', 'n': f'-v{S_}'}
        k = 0
        for (lo, hi, kind, reg) in dst:
            if kind == 'v':
                A(f'v_cvt_pk_bf16_f32 v{reg}, {m[lo]}, {m[hi]}')
            else:
                A(f'v_cvt_pk_bf16_f32 v{T + k}, {m[lo]}, {m[hi]}')
                k += 1
        k = 0
        for (lo, hi, kind, reg) in dst:
            if kind == 'a':
                A(f'v_accvgpr_write_b32 a{reg}, v{T + k}')
                k += 1
    f16, base = AC + 6, AC + 7
    A(f'v_mul_f32 v{f16}, {fl(1 / 16)}, v{fi}')
    A(f'v_add_f32 v{base}, v{fg}, v{fg}')
    A(f'v_mul_f32 v{base}, v{base}, v{f16}')
    for q in range(4):
        quad(lambda T: A(f'v_fmamk_f32 v{T}, v{f16}, {fl(8 * (q >> 1) + (q & 1))}, v{base}'),
             [('c', 's', 'v', B1R + q), ('n', 'c', 'v', B1I + q), ('c', 'n', 'v', B4R + q), ('s', 'c', 'v', B4I + q)])
    ef, g2 = AC + 8, AC + 9
    A(f's_lshl_b32 s28, s{S_OM}, 2')
    A(f'v_lshl_add_u32 v{ef}, v{vi}, 4, s28')
    A(f'v_cvt_f32_u32 v{ef}, v{ef}')
    A(f'v_mul_f32 v{ef}, {fl(1 / 256)}, v{ef}')
    A(f'v_add_f32 v{g2}, v{fg}, v{fg}')
    for ee in range(4):
        if ee:
            A(f'v_add_f32 v{ef}, {fl(1 / 256)}, v{ef}')
        A(f'v_mul_f32 v{base}, v{g2}, v{ef}')
        for q in range(4):
            quad(lambda T: A(f'v_fmamk_f32 v{T}, v{ef}, {fl(8 * (q >> 1) + (q & 1))}, v{base}'),
                 [('c', 's', 'a', A2 + ee * 8 + q), ('n', 'c', 'a', A2 + ee * 8 + 4 + q)])
    A(f'v_lshl_add_u32 v{base}, v{vg}, 6, s28')
    A(f'v_cvt_f32_u32 v{base}, v{base}')
    A(f'v_mul_f32 v{ef}, {fl(1 / 256)}, v{fi}')
    A(f'v_mul_f32 v{base}, v{base}, v{ef}')
    for ee in range(4):
        for rp in range(4):
            quad(lambda T: A(f'v_fmamk_f32 v{T}, v{ef}, {fl(ee + 16 * rp)}, v{base}'),
                 [('c', 'n', 'a', B3 + ee * 8 + rp), ('s', 'c', 'a', B3 + ee * 8 + 4 + rp)])
    fin(pend.pop(0))
    assert not wl
    A(f's_lshl_b32 s28, s{S_OM}, 6')
    A(f'v_add_u32 v{vk}, s28, v0')
    A(f'v_lshl_add_u32 v{tmp + 2}, v{vk}, 3, s{S_K1A}')
    A(f'v_sub_u32 v{tmp + 3}, 2048, v{tmp + 2}')
    A(f'v_bfe_u32 v{vkp}, v{tmp + 3}, 3, 8')
    A(f'v_and_b32 v{tmp + 3}, 7, v{tmp + 3}')
    A(f'v_lshlrev_b32 v{tmp + 3}, 11, v{tmp + 3}')
    A(f'v_lshl_add_u32 v{tmp + 3}, v{vkp}, 3, v{tmp + 3}')
    A(f's_lshl_b32 s28, s{S_K1A}, 11')
    A(f'v_lshl_add_u32 v{tmp + 2}, v{vk}, 3, s28')
    A(f's_lshr_b32 s28, s{S_W}, 2')
    A(f's_xor_b32 s31, s28, 1')
    A(f's_cmp_eq_u32 s{S_CL}, 0')
    A(f's_cselect_b32 s31, s28, s31')
    A(f's_lshl_b32 s28, s28, 11')
    A(f's_lshl_b32 s31, s31, 11')
    A(f's_add_u32 s28, s28, {XS_OFF}')
    A(f's_add_u32 s31, s31, {XS_OFF}')
    A(f'v_lshl_add_u32 v{vk}, v{vk}, 3, s28')
    A(f'v_lshl_add_u32 v{vkp}, v{vkp}, 3, s31')
    A(f's_mov_b32 s13, s28')
    A(f'v_bfe_u32 v{tmp + 4}, v0, 3, 1')
    A(f'v_lshl_add_u32 v{tmp + 4}, v{vg}, 1, v{tmp + 4}')
    A(f'v_and_b32 v{tmp + 5}, 7, v0')
    A(f'v_lshlrev_b32 v{tmp + 5}, 3, v{tmp + 5}')
    A(f'v_and_b32 v{tmp + 6}, 3, v{tmp + 4}')
    A(f'v_lshl_add_u32 v{tmp + 6}, v{tmp + 6}, 6, v{tmp + 5}')
    A(f'v_lshl_add_u32 v{tmp + 6}, v{tmp + 4}, 8, v{tmp + 6}')
    A(f'v_add_u32 v{tmp + 6}, s30, v{tmp + 6}')
    A(f'v_lshrrev_b32 v{tmp + 8}, 1, v{vi}')
    A(f'v_xor_b32 v{tmp + 8}, v{tmp + 8}, v{vg}')
    A(f'v_lshlrev_b32 v{tmp + 8}, 3, v{tmp + 8}')
    A(f'v_and_b32 v{tmp + 7}, 3, v{vi}')
    A(f'v_lshl_add_u32 v{tmp + 7}, v{tmp + 7}, 6, v{tmp + 8}')
    A(f'v_lshl_add_u32 v{tmp + 7}, v{vi}, 8, v{tmp + 7}')
    A(f'v_add_u32 v{tmp + 7}, s30, v{tmp + 7}')
    for r in range(4):
        A(f'v_xor_b32 v{vRd + r}, {r << 6}, v{tmp + 6}')
        for ro in range(2):
            A(f'v_xor_b32 v{vP + 2 * r + ro}, {(r << 6) | (ro << 5)}, v{tmp + 7}')
    A(f's_lshl_b32 s28, s{S_OM}, 10')
    A(f's_add_u32 s28, s28, s{S_GB}')
    A(f's_lshl_b32 s35, s{S_OM}, 4')
    A(f'v_mul_u32_u24 v{vR2}, {VROW}, v{tmp + 4}')
    A(f'v_add3_u32 v{vR2}, v{vR2}, v{tmp + 5}, s28')
    A(f'v_xor_b32 v{vR2}, s35, v{vR2}')
    A(f'v_xor_b32 v{vR2 + 1}, 8, v{vR2}')
    A(f'v_mul_u32_u24 v{vW2}, {VROW}, v{vi}')
    A(f'v_add3_u32 v{vW2}, v{vW2}, v{tmp + 8}, s28')
    A(f'v_xor_b32 v{vW2 + 1}, 32, v{vW2}')
    A(f'v_lshlrev_b32 v{vT2}, 20, v{vg}')
    A(f'v_lshl_add_u32 v{vT2}, v{vi}, 4, v{vT2}')
    A(f's_lshl_b32 s32, s{S_OM}, 16')
    A(f's_lshl_b32 s33, s{S_K1A}, 11')
    A(f's_add_u32 s32, s32, s33')
    A(f's_lshl_b32 s33, s{S_Q}, 8')
    A(f's_add_u32 s32, s32, s33')
    A(f's_add_u32 s32, s32, {OFF_T2}')
    A(f's_mov_b32 s36, 0xffff0000')
    ST.take(A, 1, 'mid')
    LL = A.newlabel('mid_lo1')
    A(f's_cmp_lt_u32 s{S_W}, 4')
    A(f's_cbranch_scc1 {LL}')
    if cfg.get('wst', 1) == 1:
        stage_first()
    A('s_waitcnt vmcnt(9)')
    ST.take(A, 5, 'mid0')
    read_w()
    stage(SRD_I, 38, 0)
    A('s_waitcnt vmcnt(0)')
    A.label(LL)
    ST.take(A, 6, 'mid0')
    A('s_barrier')
    LL = A.newlabel('mid_hi2')
    A(f's_cmp_ge_u32 s{S_W}, 4')
    A(f's_cbranch_scc1 {LL}')
    read_w()
    A.label(LL)
    wait_t(A, FR[0])
    A('s_barrier')
    ST.take(A, 2, 'mid')
    load_t()
    A(f's_mov_b32 s31, {OFF_WC}')
    for z in range(2):
        A(f'buffer_load_dwordx2 v[{SW + 4 * z}:{SW + 4 * z + 1}], v{tmp + 2 + z}, s[{SRD_T}:{SRD_T + 3}], s31 offen sc1')
    A('s_waitcnt vmcnt(2)')
    ST.take(A, 3, 'mid')

    def rd1(r):
        for vv in range(4):
            for t in range(2):
                d = FR[r & 1] + 4 * vv + 2 * t
                A(f'ds_read_b64_tr_b16 v[{d}:{d + 1}], v{vRd + r} offset:{vv * VROW + t * 2048}')
    rd1(0)
    for r in range(4):
        if r < 3:
            rd1(r + 1)
        nw = 8 if r > 0 else 0
        for vv in range(4):
            f = FR[r & 1] + 4 * vv
            A(f's_waitcnt lgkmcnt({min(15, (8 if r < 3 else 0) + nw + 6 - 2 * vv)})')
            A(f'v_mfma_f32_16x16x32_bf16 v[{AC + 8 * vv}:{AC + 8 * vv + 3}], v[{f}:{f + 3}], v[{B1R}:{B1R + 3}], 0')
            A(f'v_mfma_f32_16x16x32_bf16 v[{AC + 8 * vv + 4}:{AC + 8 * vv + 7}], v[{f}:{f + 3}], v[{B1I}:{B1I + 3}], 0')
        for vv in range(4):
            a = AC + 8 * vv
            p = tmp + 4 * vv
            for q in range(4):
                A(f'v_cvt_pk_bf16_f32 v{p + q}, v{a + 2 * q}, v{a + 2 * q + 1}')
            for ro in range(2):
                A(f'ds_write_b64 v{vP + 2 * r + ro}, v[{p + 2 * ro}:{p + 2 * ro + 1}] offset:{vv * VROW}')
    for r in range(4):
        A(f'v_xor_b32 v{vP + 2 * r}, s35, v{vRd + r}')
        A(f'v_xor_b32 v{vP + 2 * r + 1}, 8, v{vP + 2 * r}')
    A('s_waitcnt vmcnt(0) lgkmcnt(0)')
    A('s_barrier')
    ST.take(A, 4, 'mid2')

    def rd2(r):
        for ee in range(4):
            for t in range(2):
                d = FR[r & 1] + 4 * ee + 2 * t
                A(f'ds_read_b64_tr_b16 v[{d}:{d + 1}], v{vR2 + (ee >> 1)} offset:{t * 8 * VROW + ee * 256 + ((r ^ ee) & 3) * 64}')
    rd2(0)
    for r in range(4):
        if r < 3:
            rd2(r + 1)
        nw = 8 if r > 0 else 0
        for ee in range(4):
            f = FR[r & 1] + 4 * ee
            A(f's_waitcnt lgkmcnt({min(15, (8 if r < 3 else 0) + nw + 6 - 2 * ee)})')
            A(f'v_mfma_f32_16x16x32_bf16 v[{AC + 8 * ee}:{AC + 8 * ee + 3}], a[{A2 + 8 * ee}:{A2 + 8 * ee + 3}], v[{f}:{f + 3}], 0')
            A(f'v_mfma_f32_16x16x32_bf16 v[{AC + 8 * ee + 4}:{AC + 8 * ee + 7}], a[{A2 + 8 * ee + 4}:{A2 + 8 * ee + 7}], v[{f}:{f + 3}], 0')
        if r == 0:
            LS1 = A.newlabel('mid_nocol0a')
            A(f's_cmp_lg_u32 s{S_Q}, 0')
            A(f's_cbranch_scc1 {LS1}')
            A(f's_lshl_b32 s28, s{S_OM}, 5')
            A(f's_add_u32 s28, s28, s13')
            A(f'v_lshl_add_u32 v{tmp}, v{vg}, 9, s28')
            A('s_mov_b32 exec_lo, 0x00010001')
            A('s_mov_b32 exec_hi, 0x00010001')
            for ee in range(4):
                for rp in range(4):
                    o = ee * 2 + rp * 32
                    A(f'ds_write2_b32 v{tmp}, v{AC + 8 * ee + rp}, v{AC + 8 * ee + 4 + rp} offset0:{o} offset1:{o + 1}')
            A('s_mov_b64 exec, -1')
            A('s_waitcnt lgkmcnt(0)')
            A('s_barrier')
            xo, xp = tmp + 2, tmp + 4
            A(f'ds_read_b64 v[{xo}:{xo + 1}], v{vk}')
            A(f'ds_read_b64 v[{xp}:{xp + 1}], v{vkp}')
            for z in range(2):
                b_ = SW + 4 * z
                A(f'v_and_b32 v{b_ + 3}, s36, v{b_ + 1}')
                A(f'v_lshlrev_b32 v{b_ + 2}, 16, v{b_ + 1}')
                A(f'v_and_b32 v{b_ + 1}, s36, v{b_}')
                A(f'v_lshlrev_b32 v{b_}, 16, v{b_}')
            A(f'v_add_f32 v{SW}, v{SW}, v{SW + 4}')
            A(f'v_sub_f32 v{SW + 1}, v{SW + 1}, v{SW + 5}')
            A(f'v_add_f32 v{SW + 2}, v{SW + 2}, v{SW + 6}')
            A(f'v_sub_f32 v{SW + 3}, v{SW + 3}, v{SW + 7}')
            A(f'v_add_f32 v{SW + 4}, v{SW}, v{SW + 2}')
            A(f'v_add_f32 v{SW + 5}, v{SW + 1}, v{SW + 3}')
            A(f'v_sub_f32 v{SW + 6}, v{SW}, v{SW + 2}')
            A(f'v_sub_f32 v{SW + 7}, v{SW + 1}, v{SW + 3}')
            A('s_waitcnt lgkmcnt(0)')
            y = tmp + 6
            A(f'v_mul_f32 v{y}, v{xo}, v{SW + 4}')
            A(f'v_mul_f32 v{y + 1}, v{xo}, v{SW + 5}')
            A(f'v_fma_f32 v{y}, -v{xo + 1}, v{SW + 5}, v{y}')
            A(f'v_fma_f32 v{y + 1}, v{xo + 1}, v{SW + 4}, v{y + 1}')
            A(f'v_fma_f32 v{y}, v{xp}, v{SW + 6}, v{y}')
            A(f'v_fma_f32 v{y + 1}, v{xp}, v{SW + 7}, v{y + 1}')
            A(f'v_fma_f32 v{y}, v{xp + 1}, v{SW + 7}, v{y}')
            A(f'v_fma_f32 v{y + 1}, -v{xp + 1}, v{SW + 6}, v{y + 1}')
            A(f'v_mul_f32 v{y}, {fl(0.125)}, v{y}')
            A(f'v_mul_f32 v{y + 1}, {fl(0.125)}, v{y + 1}')
            A(f'v_cvt_pk_bf16_f32 v{y}, v{y}, v{y + 1}')
            A(f'ds_write_b32 v{vk}, v{y} offset:{YS_OFF - XS_OFF}')
            A(f'v_mov_b32 v{vk}, v{tmp}')
            A('s_waitcnt lgkmcnt(0)')
            A('s_barrier')
            A.label(LS1)
        for ee in range(4):
            a = AC + 8 * ee
            w = tmp + 8 * (ee & 1)
            for rp in range(4):
                src = (ee * 4 + rp) * 4 + (r >> 1)
                for (W_, o) in ((WR, 0), (WR + 2, 4)):
                    if r & 1:
                        A(f'v_and_b32 v{w + o + rp}, s36, v{W_ + src}')
                    else:
                        A(f'v_lshlrev_b32 v{w + o + rp}, 16, v{W_ + src}')
            f = FR[r & 1] + 4 * ee
            for h in range(2):
                xr, xi = f'v[{a + 2 * h}:{a + 2 * h + 1}]', f'v[{a + 4 + 2 * h}:{a + 5 + 2 * h}]'
                wr, wi = f'v[{w + 2 * h}:{w + 2 * h + 1}]', f'v[{w + 4 + 2 * h}:{w + 5 + 2 * h}]'
                t0 = f'v[{f + 2 * h}:{f + 2 * h + 1}]'
                A(f'v_pk_mul_f32 {t0}, {xr}, {wr}')
                A(f'v_pk_mul_f32 {xr}, {xr}, {wi}')
                A(f'v_pk_fma_f32 {t0}, {xi}, {wi}, {t0} neg_lo:[1,0,0] neg_hi:[1,0,0]')
                A(f'v_pk_fma_f32 {xr}, {xi}, {wr}, {xr}')
            for rp in range(4):
                A(f'v_cvt_pk_bf16_f32 v{f + rp}, v{f + rp}, v{a + rp}')
        if r == 0:
            LS2 = A.newlabel('mid_nocol0b')
            A(f's_cmp_lg_u32 s{S_Q}, 0')
            A(f's_cbranch_scc1 {LS2}')
            A('s_mov_b32 exec_lo, 0x00010001')
            A('s_mov_b32 exec_hi, 0x00010001')
            for ee in range(4):
                for rp in range(4):
                    A(f'ds_read_b32 v{FR[0] + 4 * ee + rp}, v{vk} offset:{YS_OFF - XS_OFF + ee * 8 + rp * 128}')
            A('s_waitcnt lgkmcnt(0)')
            A('s_mov_b64 exec, -1')
            A.label(LS2)
        for ee in range(4):
            f = FR[r & 1] + 4 * ee
            A(f'v_mfma_f32_16x16x32_bf16 v[{AC + 8 * ee}:{AC + 8 * ee + 3}], v[{f}:{f + 3}], a[{B3 + 8 * ee}:{B3 + 8 * ee + 3}], 0')
            A(f'v_mfma_f32_16x16x32_bf16 v[{AC + 8 * ee + 4}:{AC + 8 * ee + 7}], v[{f}:{f + 3}], a[{B3 + 8 * ee + 4}:{B3 + 8 * ee + 7}], 0')
        for ee in range(4):
            a = AC + 8 * ee
            p = tmp + 4 * ee
            for q in range(4):
                A(f'v_cvt_pk_bf16_f32 v{p + q}, v{a + 2 * q}, v{a + 2 * q + 1}')
            o = ee * 256 + ((r ^ ee) & 3) * 64
            for ro in range(2):
                A(f'ds_write_b64 v{vW2 + ro}, v[{p + 2 * ro}:{p + 2 * ro + 1}] offset:{o}')
    A('s_waitcnt lgkmcnt(0)')
    A('s_barrier')
    ST.take(A, 5, 'mid2')

    def rd3(vv):
        for r in range(4):
            for t in range(2):
                d = FR[vv & 1] + 4 * r + 2 * t
                A(f'ds_read_b64_tr_b16 v[{d}:{d + 1}], v{vP + 2 * r + (vv >> 1)} offset:{vv * VROW + t * 2048}')
    rd3(0)
    for vv in range(4):
        if vv < 3:
            rd3(vv + 1)
        for r in range(4):
            f = FR[vv & 1] + 4 * r
            A(f's_waitcnt lgkmcnt({(8 if vv < 3 else 0) + 6 - 2 * r})')
            A(f'v_mfma_f32_16x16x32_bf16 v[{AC + 8 * r}:{AC + 8 * r + 3}], v[{B4R}:{B4R + 3}], v[{f}:{f + 3}], 0')
            A(f'v_mfma_f32_16x16x32_bf16 v[{AC + 8 * r + 4}:{AC + 8 * r + 7}], v[{B4I}:{B4I + 3}], v[{f}:{f + 3}], 0')
        p = WR + 16 * vv
        for q in range(4):
            for r in range(4):
                A(f'v_cvt_pk_bf16_f32 v{p + 4 * q + r}, v{AC + 8 * r + q}, v{AC + 8 * r + 4 + q}')
            A(f's_add_u32 s33, s32, {vv * 16384 + q * 16 * 16384}')
            A(f'buffer_store_dwordx4 v[{p + 4 * q}:{p + 4 * q + 3}], v{vT2}, s[{SRD_T}:{SRD_T + 3}], s33 offen {t2s}')


RROW = 1024


def ifft_consts(A, S_S2, RG, LB, LT):
    M8, BC, BS, BN, TR, TI, CC, CN, vSg, vWr, vRd, vIm, vSo, tmp = (RG[k] for k in (
        'M8', 'BC', 'BS', 'BN', 'TR', 'TI', 'CC', 'CN', 'vSg', 'vWr', 'vRd', 'vIm', 'vSo', 'tmp'))
    vh, vc, vf, vb = tmp + 6, tmp + 7, tmp + 8, tmp + 9
    A(f'v_bfe_u32 v{vf}, v0, 1, 3')
    A(f'v_lshlrev_b32 v{vf}, 8, v{vf}')
    A(f'v_add_u32 v{vf}, s{S_S2}, v{vf}')
    A(f'v_cvt_f32_u32 v{vf}, v{vf}')
    A(f'v_mul_f32 v{vf}, {fl(1 / 2048)}, v{vf}')
    A(f'v_lshrrev_b32 v{vh}, 4, v0')
    A(f'v_lshlrev_b32 v{vh}, 1, v{vh}')
    A(f'v_cvt_f32_u32 v{vh}, v{vh}')
    A(f'v_and_b32 v{vc}, 1, v0')
    A(f'v_cvt_f32_u32 v{vc}, v{vc}')
    A(f'v_mul_f32 v{vb}, v{vh}, v{vf}')
    A(f'v_fmac_f32 v{vb}, {fl(-0.25)}, v{vc}')
    A(f'v_add_f32 v{vh}, v{vb}, v{vf}')
    A(f'v_cos_f32 v{tmp}, v{vb}')
    A(f'v_sin_f32 v{tmp + 1}, -v{vb}')
    A(f'v_cos_f32 v{tmp + 2}, v{vh}')
    A(f'v_sin_f32 v{tmp + 3}, -v{vh}')
    A(f'v_fma_f32 v{vSg}, v{vc}, -2.0, 1.0')
    A(f'v_cmp_gt_u32 vcc, 32, v0')
    for i in range(4):
        A(f'v_mul_f32 v{tmp + i}, {fl(2.0 ** -20)}, v{tmp + i}')
    A(f'v_cndmask_b32 v{vSg}, 0, v{vSg}, vcc')
    A(f'v_cvt_pk_bf16_f32 v{M8}, v{tmp}, v{tmp + 1}')
    A(f'v_cvt_pk_bf16_f32 v{M8 + 1}, v{tmp + 2}, v{tmp + 3}')
    A(f'v_and_b32 v{vb}, 0x13, v0')
    A(f'v_bfe_u32 v{vf}, v0, 2, 1')
    A(f'v_lshl_or_b32 v{vb}, v{vf}, 3, v{vb}')
    A(f'v_bfe_u32 v{vf}, v0, 3, 1')
    A(f'v_lshl_or_b32 v{vb}, v{vf}, 2, v{vb}')
    A(f'v_cvt_f32_u32 v{vf}, v{vb}')
    A(f'v_mul_f32 v{vf}, {fl(1 / 32)}, v{vf}')
    A(f'v_lshrrev_b32 v{vh}, 5, v0')
    A(f'v_cvt_f32_u32 v{vh}, v{vh}')
    A(f'v_mul_f32 v{vb}, {fl(8.0)}, v{vh}')
    A(f'v_mul_f32 v{vb}, v{vb}, v{vf}')
    for p in range(4):
        A(f'v_fmamk_f32 v{tmp}, v{vf}, {fl(2 * p)}, v{vb}')
        A(f'v_fmamk_f32 v{tmp + 1}, v{vf}, {fl(2 * p + 1)}, v{vb}')
        A(f'v_cos_f32 v{tmp + 2}, v{tmp}')
        A(f'v_cos_f32 v{tmp + 3}, v{tmp + 1}')
        A(f'v_sin_f32 v{tmp + 4}, v{tmp}')
        A(f'v_sin_f32 v{tmp + 5}, v{tmp + 1}')
        A(f'v_cvt_pk_bf16_f32 v{BC + p}, v{tmp + 2}, v{tmp + 3}')
        A(f'v_cvt_pk_bf16_f32 v{BS + p}, v{tmp + 4}, v{tmp + 5}')
        A(f'v_cvt_pk_bf16_f32 v{BN + p}, -v{tmp + 4}, -v{tmp + 5}')
    A(f'v_mul_f32 v{vf}, {fl(1 / 32)}, v{vf}')
    A(f'v_mul_f32 v{vb}, {fl(4.0)}, v{vh}')
    A(f'v_mul_f32 v{vb}, v{vb}, v{vf}')
    for i in range(16):
        t = tmp + (i & 1)
        A(f'v_fmamk_f32 v{t}, v{vf}, {fl(8 * (i >> 2) + (i & 3))}, v{vb}')
        A(f'v_cos_f32 v{TR + i}, v{t}')
        A(f'v_sin_f32 v{TI + i}, v{t}')
    A(f'v_and_b32 v{vf}, 31, v0')
    A(f'v_cvt_f32_u32 v{vf}, v{vf}')
    A(f'v_mul_f32 v{vf}, {fl(1 / 32)}, v{vf}')
    A(f'v_mul_f32 v{vb}, {fl(4.0)}, v{vh}')
    A(f'v_mul_f32 v{vb}, v{vb}, v{vf}')
    trig_pairs(A, CC, CN, lambda i, r: A(f'v_fmamk_f32 v{r}, v{vf}, {fl(16 * (i >> 3) + 8 * ((i >> 2) & 1) + (i & 3))}, v{vb}'), 16, tmp, True)
    vLd = RG['vLd']
    A(f'v_and_b32 v{tmp}, 15, v0')
    A(f'v_lshrrev_b32 v{tmp + 2}, 4, v0')
    A(f'v_lshlrev_b32 v{tmp + 1}, 3, v{tmp + 2}')
    A(f'v_and_b32 v{tmp + 3}, 7, v0')
    A(f'v_lshlrev_b32 v{tmp + 3}, 4, v{tmp + 3}')
    A(f'v_xor_b32 v{tmp + 1}, v{tmp + 1}, v{tmp + 3}')
    A(f'v_lshl_add_u32 v{tmp + 1}, v{tmp}, 10, v{tmp + 1}')
    A(f's_lshl_b32 s28, s{S_W}, 8')
    A(f's_add_u32 s28, s28, {LB}')
    A(f'v_add_u32 v{vWr}, s28, v{tmp + 1}')
    for t in range(1, 4):
        A(f'v_xor_b32 v{vWr + t}, {t * 32}, v{vWr}')
    A(f'v_lshrrev_b32 v{tmp + 1}, 1, v{tmp}')
    A(f's_lshl_b32 s28, s{S_W}, 1')
    A(f'v_xor_b32 v{tmp + 1}, s28, v{tmp + 1}')
    A(f'v_lshlrev_b32 v{tmp + 1}, 4, v{tmp + 1}')
    A(f'v_lshl_add_u32 v{tmp + 1}, v{tmp}, 7, v{tmp + 1}')
    A(f'v_lshl_add_u32 v{tmp + 1}, v{tmp + 2}, 12, v{tmp + 1}')
    A(f'v_add_u32 v{vLd}, {LT}, v{tmp + 1}')
    A(f'v_xor_b32 v{vLd + 1}, 16, v{vLd}')
    A(f's_lshl_b32 s28, s{S_W}, 11')
    A(f's_add_u32 s28, s28, {LB}')
    A(f's_lshl_b32 s29, s{S_W}, 5')
    A(f'v_and_b32 v{tmp}, 31, v0')
    A(f'v_lshlrev_b32 v{tmp}, 5, v{tmp}')
    A(f'v_lshrrev_b32 v{tmp + 1}, 5, v0')
    A(f'v_lshl_add_u32 v{tmp}, v{tmp + 1}, 4, v{tmp}')
    A(f'v_xor_b32 v{tmp}, s29, v{tmp}')
    A(f'v_add_u32 v{vRd}, s28, v{tmp}')
    A(f'v_xor_b32 v{vRd + 1}, 16, v{vRd}')
    A(f's_add_u32 s28, s28, s29')
    A(f's_add_u32 s28, s28, 16')
    A(f'v_mov_b32 v{vIm}, s28')
    A(f'v_and_b32 v{tmp}, 15, v0')
    A(f'v_lshlrev_b32 v{vSo}, 6, v{tmp}')
    A(f'v_bfe_u32 v{tmp}, v0, 4, 1')
    A(f'v_lshl_add_u32 v{vSo}, v{tmp}, 5, v{vSo}')
    A(f'v_lshrrev_b32 v{tmp}, 5, v0')
    A(f'v_lshl_add_u32 v{vSo}, v{tmp}, 4, v{vSo}')


def ifft_regs(start):
    R = Alloc(start, 256)
    RG = dict(M8=R(2, 2), BC=R(4, 4), BS=R(4, 4), BN=R(4, 4), TR=R(16, 2), TI=R(16, 2), CC=R(8, 4), CN=R(8, 4),
              vSg=R(), vWr=R(4), vRd=R(2), vIm=R(), vSo=R(), vLd=R(2), tmp=R(12, 4), L=R(16, 4),
              ZR=[R(16, 4), R(16, 4)], ZI=[R(16, 4), R(16, 4)], IM=R(2, 2))
    RG['end'] = R.n
    return RG


def ifft_compute(A, S_S2, RG, mid_hook=None):
    M8, BC, BS, BN, TR, TI, CC, CN, vSg, vWr, vRd, vIm, vSo, tmp, L, ZR, ZI, IM = (RG[k] for k in (
        'M8', 'BC', 'BS', 'BN', 'TR', 'TI', 'CC', 'CN', 'vSg', 'vWr', 'vRd', 'vIm', 'vSo', 'tmp', 'L', 'ZR', 'ZI', 'IM'))
    SRD, sflag, vLd = SRD_WS, 'sc1', RG['vLd']
    for p in range(2):
        for x in range(2):
            d = L + 8 * p + 4 * x
            A(f'ds_read_b128 v[{d}:{d + 3}], v{vLd + p} offset:{x * 2048}')
    A(f'v_mov_b32 v{IM}, 0')
    A(f'v_mov_b32 v{IM + 1}, 0')
    for p in range(2):
        A(f's_waitcnt lgkmcnt({2 - 2 * p})')
        for t in range(4):
            a = ZI[p] + 2 * t
            s0 = L + 8 * p + (t & 2)
            A(f'v_pk_mov_b32 v[{a}:{a + 1}], v[{s0}:{s0 + 1}], v[{s0 + 4}:{s0 + 5}] op_sel:[{t & 1},{t & 1}]')
        for t in range(4):
            a = ZI[p] + 2 * t
            A(f'v_mfma_f32_16x16x16_bf16 v[{ZR[p] + 4 * t}:{ZR[p] + 4 * t + 3}], v[{a}:{a + 1}], v[{M8}:{M8 + 1}], 0')
    for p in range(2):
        for t in range(4):
            a = ZI[p] + 8 + 2 * t
            A(f'v_cvt_pk_bf16_f32 v{a}, v{ZR[p] + 4 * t}, v{ZR[p] + 4 * t + 1}')
            A(f'v_cvt_pk_bf16_f32 v{a + 1}, v{ZR[p] + 4 * t + 2}, v{ZR[p] + 4 * t + 3}')
            A(f'ds_write_b64 v{vWr + t}, v[{a}:{a + 1}] offset:{p * 128}')
    A(f's_lshl_b32 s28, s{S_S2}, 3')
    A(f's_add_u32 s28, s28, s{S_W}')
    A(f's_lshl_b32 s28, s28, 11')
    A(f's_add_u32 s28, s28, {OFF_S}')
    A(f's_add_u32 s29, s28, {4 * 2048}')
    A('s_waitcnt lgkmcnt(0)')
    A('s_barrier')
    if mid_hook:
        mid_hook(A)
    for z in range(2):
        for ro in range(2):
            d = L + 8 * z + 4 * ro
            A(f'ds_read_b128 v[{d}:{d + 3}], v{vRd + ro} offset:{(8 * z + ro) * RROW}')
        A(f'ds_read_u16_d16_hi v{IM + z}, v{vIm} offset:{(8 * z + 1) * RROW}')
    for z in range(2):
        A(f's_waitcnt lgkmcnt({4 - 3 * z})')
        re, im = L + 8 * z, L + 8 * z + 4
        for (Z, c0, c1) in ((ZR[z], BC, BN), (ZI[z], BS, BC)):
            A(f'v_mfma_f32_32x32x16_bf16 v[{Z}:{Z + 15}], v[{re}:{re + 3}], v[{c0}:{c0 + 3}], 0')
        for (Z, c0, c1) in ((ZR[z], BC, BN), (ZI[z], BS, BC)):
            A(f'v_mfma_f32_32x32x16_bf16 v[{Z}:{Z + 15}], v[{im}:{im + 3}], v[{c1}:{c1 + 3}], v[{Z}:{Z + 15}]')
    A('s_waitcnt lgkmcnt(0)')
    for z in range(2):
        Yr, Yi = ZR[z], ZI[z]
        PR, PI = L, L + 8
        A(f'v_fmac_f32 v{Yr}, v{IM + z}, v{vSg}')
        for q in range(8):
            yr, yi, tr, ti = (f'v[{x + 2 * q}:{x + 2 * q + 1}]' for x in (Yr, Yi, TR, TI))
            a0 = tmp + 2 * (q & 1)
            t0 = f'v[{a0}:{a0 + 1}]'
            A(f'v_pk_mul_f32 {t0}, {yr}, {tr}')
            A(f'v_pk_mul_f32 {yr}, {yr}, {ti}')
            A(f'v_pk_fma_f32 {t0}, {yi}, {ti}, {t0} neg_lo:[1,0,0] neg_hi:[1,0,0]')
            A(f'v_pk_fma_f32 {yr}, {yi}, {tr}, {yr}')
            A(f'v_cvt_pk_bf16_f32 v{PR + q}, v{a0}, v{a0 + 1}')
            A(f'v_cvt_pk_bf16_f32 v{PI + q}, v{Yr + 2 * q}, v{Yr + 2 * q + 1}')
        seq = [(PR, CC, 0), (PI, CN, 0), (PR, CC, 1), (PI, CN, 1)]
        for n, (d, c, kk) in enumerate(seq):
            A(f'v_mfma_f32_32x32x16_bf16 v[{Yi}:{Yi + 15}], v[{d + 4 * kk}:{d + 4 * kk + 3}], v[{c + 4 * kk}:{c + 4 * kk + 3}], ' + ('0' if n == 0 else f'v[{Yi}:{Yi + 15}]'))
    for z in range(2):
        Yr, Yi = ZR[z], ZI[z]
        for q in range(8):
            A(f'v_cvt_pk_bf16_f32 v{Yr + q}, v{Yi + 2 * q}, v{Yi + 2 * q + 1}')
        for q in range(4):
            A(f'v_permlane16_swap_b32 v{Yr + q}, v{Yr + 4 + q}')
        for hh in range(2):
            A(f'buffer_store_dwordx4 v[{Yr + 4 * hh}:{Yr + 4 * hh + 3}], v{vSo}, s[{SRD}:{SRD + 3}], s{28 + z} offen offset:{hh * 1024} {sflag}')
```

```python
from asmlib import *
from gemm import make_srd
from model import OFF_T, OFF_T2, OFF_S, OFF_H, OFF_SY, OFF_ST, OFF_CS, OFF_EX
import fft2
from fft2 import P_X, P_WR, P_WI, P_W1, P_B1, P_W2, P_B2, P_OUT, P_DBG, P_WS, SRD_WS, S_W, fl

K = 1024
WS = f's[{SRD_WS}:{SRD_WS + 3}]'
L_P1, L_W, L_H, L_T2, L_S, L_CS, L_EX, L_N = 0, 16, 32, 64, 80, 96, 128, 384
G1A, G1B = 0, 48 * K
P1_LB = 112 * K
AUXW = 148 * K
AUXX = AUXW + 2048
AUXZ = AUXX + 1024
G2A, G2B = 0, 80 * K
XCH, T2IN = 64 * K, 144 * K
SPIN = 1 << 14
S_TM, S_I, S_KH, S_TN2, S_OWN, S_MID = 3, 4, 44, 45, 46, 47


class VQ:
    def __init__(self, A):
        self.A = A
        self.q = []

    def __call__(self, text, tag=None):
        self.A(text)
        self.q.append(tag)

    def wait(self, tag):
        if tag not in self.q:
            return
        last = max(i for i, t in enumerate(self.q) if t == tag)
        n = len(self.q) - 1 - last
        self.A(f's_waitcnt vmcnt({min(n, 63)})')
        if n <= 63:
            self.q = self.q[last + 1:]

    def drain(self):
        self.A('s_waitcnt vmcnt(0)')
        self.q = []

    def copy(self):
        o = VQ(self.A)
        o.q = list(self.q)
        return o


def spin(A, vaddr, vdst, soff, target, nl=1, first_done=False, sc=40):
    L0, L1 = A.newlabel('spin'), A.newlabel('spun')
    A(f's_mov_b32 s{sc}, 0')
    if first_done:
        LC = A.newlabel('spinc')
        A(f's_branch {LC}')
    A.label(L0)
    A(f'buffer_load_dword v{vdst}, v{vaddr}, {WS}, {soff} offen sc1')
    A('s_waitcnt vmcnt(0)')
    if first_done:
        A.label(LC)
    A(f'v_cmp_gt_u32 vcc, {target}, v{vdst}')
    A(f's_and_b32 s{sc + 1}, vcc_lo, {(1 << nl) - 1:#x}')
    A(f's_cbranch_scc0 {L1}')
    A(f's_add_u32 s{sc}, s{sc}, 1')
    A(f's_cmp_lt_u32 s{sc}, {SPIN}')
    A(f's_cbranch_scc1 {L0}')
    A.label(L1)


def boot_check(A, v0, v1, issue=True, check=True, Q=None):
    if issue:
        A(f'v_mov_b32 v{v0}, 0')
        (Q or A)(f'global_load_dword v{v1}, v{v0}, s[{P_DBG}:{P_DBG + 1}] sc1', *(['boot'] if Q else []))
    if check:
        L0, L1 = A.newlabel('boot'), A.newlabel('booted')
        A('s_mov_b32 s40, 0')
        if Q:
            Q.wait('boot')
        else:
            A('s_waitcnt vmcnt(0)')
        A.label(L0)
        A(f'v_readfirstlane_b32 s41, v{v1}')
        A('s_cmp_lg_u32 s41, 0')
        A(f's_cbranch_scc1 {L1}')
        A(f'global_load_dword v{v1}, v{v0}, s[{P_DBG}:{P_DBG + 1}] sc1')
        A('s_add_u32 s40, s40, 1')
        A(f's_cmp_lt_u32 s40, {SPIN}')
        A('s_waitcnt vmcnt(0)')
        A(f's_cbranch_scc1 {L0}')
        A.label(L1)


def signal(A, line_sreg_expr, v0, v1, Q=None):
    A(f'v_mov_b32 v{v0}, 1')
    A('s_mov_b64 exec, 1')
    (Q or A)(f'buffer_atomic_add v{v0}, off, {WS}, {line_sreg_expr} sc1')
    A('s_mov_b64 exec, -1')


def line(A, dst, base, idx_sreg, mul=1, add_sreg=None):
    A(f's_lshl_b32 s{dst}, s{idx_sreg}, {7 + (mul - 1)}')
    if add_sreg is not None:
        A(f's_lshl_b32 s43, s{add_sreg}, 7')
        A(f's_add_u32 s{dst}, s{dst}, s43')
    A(f's_add_u32 s{dst}, s{dst}, {OFF_SY + base * 128}')


def g1_consumer(A, cfg, ST):
    vX, vW, vH, vAW, vAX, vHL, vT = 128, 130, 134, 135, 136, 137, 138
    NST = 3
    A(f'v_lshrrev_b32 v{vT}, 4, v0')
    A(f'v_and_b32 v{vT + 1}, 15, v0')
    A(f'v_lshrrev_b32 v{vT + 2}, 1, v{vT + 1}')
    A(f'v_xor_b32 v{vT + 2}, v{vT + 2}, v{vT}')
    A(f'v_lshlrev_b32 v{vT + 2}, 4, v{vT + 2}')
    A(f'v_lshl_add_u32 v{vX}, v{vT + 1}, 7, v{vT + 2}')
    A(f'v_xor_b32 v{vX + 1}, 64, v{vX}')
    t0 = vT + 3
    A(f'v_bfe_u32 v{t0}, v0, 2, 2')
    A(f'v_lshl_add_u32 v{t0 + 1}, v{vT}, 3, v{t0}')
    A(f'v_lshlrev_b32 v{t0 + 1}, 9, v{t0 + 1}')
    A(f'v_and_b32 v{t0 + 2}, 3, v0')
    A(f'v_lshl_add_u32 v{t0 + 1}, v{t0 + 2}, 3, v{t0 + 1}')
    A(f'v_add_u32 v{t0 + 1}, {G1B}, v{t0 + 1}')
    A(f'v_and_b32 v{t0 + 2}, 1, v{vT}')
    A(f'v_lshl_or_b32 v{t0}, v{t0 + 2}, 2, v{t0}')
    A(f's_lshl_b32 s15, s{S_W}, 2')
    for nt in range(4):
        A(f's_add_u32 s28, s15, {nt}')
        A(f'v_xor_b32 v{t0 + 2}, s28, v{t0}')
        A(f'v_lshl_add_u32 v{vW + nt}, v{t0 + 2}, 5, v{t0 + 1}')

    def reads(st, kb):
        r = []
        for nt in range(4):
            for t in range(2):
                d = 160 + 16 * st + nt * 4 + 2 * t
                r.append(f'ds_read_b64_tr_b16 v[{d}:{d + 1}], v{vW + nt} offset:{kb * 16384 + t * 2048}')
        for mt in range(8):
            d = 32 * st + mt * 4
            r.append(f'ds_read_b128 a[{d}:{d + 3}], v{vX + kb} offset:{mt * 2048}')
        return r

    CS, ONE = vT + 2, 156

    def substep(st, rd, extra, first=False, cs=None):
        i = 0
        if cs is not None:
            LC = A.newlabel('g1_nocs')
            A('s_cmp_lg_u32 s30, s35')
            A(f's_cbranch_scc1 {LC}')
            for nt in range(4):
                w = 160 + 16 * st + nt * 4
                A(f'v_mfma_f32_16x16x32_bf16 v[{CS + 4 * nt}:{CS + 4 * nt + 3}], v[{w}:{w + 3}], v[{ONE}:{ONE + 3}], ' + ('0' if cs == 0 else f'v[{CS + 4 * nt}:{CS + 4 * nt + 3}]'))
            A.label(LC)
        for mt in range(8):
            for nt in (range(4) if mt % 2 == 0 else range(3, -1, -1)):
                c = (nt * 8 + mt) * 4
                w = 160 + 16 * st + nt * 4
                x = 32 * st + mt * 4
                A(f'v_mfma_f32_16x16x32_bf16 v[{c}:{c + 3}], v[{w}:{w + 3}], a[{x}:{x + 3}], ' + ('0' if first else f'v[{c}:{c + 3}]'))
                if i < len(rd):
                    A(rd[i])
                elif i - len(rd) < len(extra):
                    A(extra[i - len(rd)])
                i += 1
        assert len(rd) + len(extra) <= 32

    A('s_mov_b32 s30, 0')
    A('s_mov_b32 s31, 0')
    A(f's_and_b32 s35, s{S_TM}, 3')
    A(f's_mov_b32 s34, {-2 * 16384 & 0xffffffff:#x}')
    A('s_barrier')
    ST.take(A, 1, 'main')
    for ins in reads(0, 0):
        A(ins)
    A(f'v_lshlrev_b32 v{vHL}, 4, v0')
    A(f's_mul_i32 s28, s{S_TM}, {8 * 112 * 1024}')
    A(f's_lshl_b32 s29, s{S_I}, 13')
    A(f's_add_u32 s28, s28, s29')
    A(f's_lshl_b32 s29, s{S_W}, 11')
    A(f's_add_u32 s28, s28, s29')
    A(f'v_add_u32 v{vH}, s28, v{vHL}')
    A(f's_lshl_b32 s29, s{S_W}, 14')
    A(f'v_add_u32 v{vHL}, s29, v{vHL}')
    A(f's_lshl_b32 s29, s{S_W}, 9')
    A(f's_add_u32 s29, s29, {AUXW}')
    A(f'v_lshl_add_u32 v{vAW}, v{vT + 1}, 3, s29')
    A(f'v_min_u32 v{vAX}, 1, v{vT}')
    A(f'v_lshlrev_b32 v{vAX}, 10, v{vAX}')
    A(f'v_lshl_add_u32 v{vAX}, v{vT + 1}, 3, v{vAX}')
    A(f'v_add_u32 v{vAX}, {AUXX}, v{vAX}')
    for r in range(4):
        A(f'v_mov_b32 v{ONE + r}, 0x3f803f80')
    A(f'v_lshlrev_b32 v{vT}, 4, v{vT}')
    A(f's_mul_i32 s29, s{S_TM}, {3584 * 4}')
    A(f's_lshl_b32 s28, s{S_I}, 10')
    A('s_add_u32 s29, s29, s28')
    A(f's_lshl_b32 s28, s{S_W}, 8')
    A('s_add_u32 s29, s29, s28')
    A(f's_add_u32 s29, s29, {OFF_CS}')
    A('s_waitcnt lgkmcnt(0)')
    upd = ['s_add_u32 s31, s31, 1', f's_cmp_eq_u32 s31, {NST}', 's_cselect_b32 s32, s34, 16384', 's_cselect_b32 s31, 0, s31',
           's_lshl_b32 s33, s32, 1', f'v_add_u32 v{vX}, s32, v{vX}', f'v_add_u32 v{vX + 1}, s32, v{vX + 1}'] + \
          [f'v_add_u32 v{vW + nt}, s33, v{vW + nt}' for nt in range(4)]
    st_ = ['s_mov_b32 exec_lo, 0x00010001', 's_mov_b32 exec_hi, 0x00010001'] + \
          [f'buffer_store_dwordx4 v[{CS + 4 * nt}:{CS + 4 * nt + 3}], v{vT}, {WS}, s29 offen offset:{nt * 64} sc1' for nt in range(4)] + \
          ['s_mov_b64 exec, -1']
    substep(0, reads(1, 1), upd, first=True, cs=0)
    LA, LV = A.newlabel('g1_loopa'), A.newlabel('g1_nova')
    A.label(LA)
    A(f's_cmp_lg_u32 s30, {cfg.get("p1sig", 1)}')
    A(f's_cbranch_scc1 {LV}')
    A('s_waitcnt vmcnt(0)')
    A.label(LV)
    A('s_waitcnt lgkmcnt(0)')
    A('s_barrier')
    LS = A.newlabel('g1_nost')
    substep(1, reads(0, 0), ['\n'.join(['s_cmp_lg_u32 s30, s35', f's_cbranch_scc1 {LS}'] + st_ + [LS + ':']), 's_add_u32 s30, s30, 1'], cs=1)
    A('s_waitcnt lgkmcnt(0)')
    substep(0, reads(1, 1), upd + ['s_cmp_lt_u32 s30, 4'], cs=0)
    A(f's_cbranch_scc1 {LA}')
    L, LL, LV = A.newlabel('g1_loop'), A.newlabel('g1_last'), A.newlabel('g1_nov')
    A.label(L)
    A(f's_cmp_lg_u32 s30, {cfg.get("cssig", 5)}')
    A(f's_cbranch_scc1 {LV}')
    A('s_waitcnt vmcnt(0)')
    A.label(LV)
    A('s_cmp_eq_u32 s30, 15')
    A('s_waitcnt lgkmcnt(0)')
    A('s_barrier')
    A(f's_cbranch_scc1 {LL}')
    substep(1, reads(0, 0), ['s_add_u32 s30, s30, 1'])
    A('s_waitcnt lgkmcnt(0)')
    substep(0, reads(1, 1), upd)
    A(f's_branch {L}')
    A.label(LL)
    aux = [f'ds_read_b64 v[{160 + 2 * nt}:{161 + 2 * nt}], v{vAW} offset:{nt * 128}' for nt in range(4)] + \
          [f'ds_read_b64 a[{2 * mt}:{2 * mt + 1}], v{vAX} offset:{mt * 128}' for mt in range(8)]
    substep(1, aux, [f's_mov_b32 s28, {OFF_H}'])
    A('s_waitcnt lgkmcnt(0)')
    A('s_barrier')
    ST.take(A, 2, 'main')

    def corr(mt):
        return [f'v_mfma_f32_16x16x16_bf16 v[{(nt * 8 + mt) * 4}:{(nt * 8 + mt) * 4 + 3}], v[{160 + 2 * nt}:{161 + 2 * nt}], a[{2 * mt}:{2 * mt + 1}], v[{(nt * 8 + mt) * 4}:{(nt * 8 + mt) * 4 + 3}]'
                for nt in range(4)]
    for ins in corr(0) + corr(1):
        A(ins)
    tp = [vT, vT + 4, vT + 8, vT + 12]
    k = 0
    for mt in range(8):
        cm = corr(mt + 2) if mt + 2 < 8 else []
        for p in range(2):
            o = tp[k & 3]
            k += 1
            for q in range(2):
                c = ((2 * p + q) * 8 + mt) * 4
                if cm:
                    A(cm.pop(0))
                for r in range(4):
                    A(f'v_max_f32 v{c + r}, 0, v{c + r}')
                for r in range(0, 4, 2):
                    A(f'v_pk_mul_f32 v[{c + r}:{c + r + 1}], v[{c + r}:{c + r + 1}], v[{c + r}:{c + r + 1}]')
                for r in range(0, 4, 2):
                    A(f'v_cvt_pk_bf16_f32 v{o + 2 * q + r // 2}, v{c + r}, v{c + r + 1}')
            A(f'buffer_store_dwordx4 v[{o}:{o + 3}], v{vH}, {WS}, s28 offen offset:{p * 1024} sc1')
            A(f'ds_write_b128 v{vHL}, v[{o}:{o + 3}] offset:{(mt * 2 + p) * 1024}')
        if mt < 7:
            A(f's_add_u32 s28, s28, {112 * 1024}')
    ST.take(A, 3, 'main')


VL = 40
SRD_L = 16


def g2_loader_setup(A):
    LB_, LE = A.newlabel('g2l_b'), A.newlabel('g2l_e')
    A(f's_and_b32 s28, s{S_W}, 1')
    A(f's_lshl_b32 s30, s28, 13')
    A(f's_mov_b32 s32, s{S_OWN}')
    for q in range(6):
        A(f's_cmp_le_u32 s{S_OWN}, {q}')
        A(f's_cselect_b32 s{33 + q}, {q + 1}, {q}')
    A('s_mov_b32 s24, 0')
    A(f's_cmp_ge_u32 s{S_W}, 2')
    A(f's_cbranch_scc1 {LB_}')
    for j in range(4):
        A(f's_mov_b32 s{SRD_L + j}, s{SRD_WS + j}')
    A(f's_mov_b32 s{SRD_L + 3}, 0x20000')
    for t in range(1, 4):
        A(f's_movk_i32 s{24 + t}, {t * 2048}')
    for q in range(7):
        A(f's_lshl_b32 s{32 + q}, s{32 + q}, 14')
    A(f's_lshl_b32 s29, s{S_TM}, 3')
    A(f's_lshl_b32 s28, s28, 2')
    A(f's_add_u32 s28, s28, s29')
    A(f's_mul_i32 s28, s28, {112 * 1024}')
    A(f's_lshl_b32 s29, s{S_KH}, 13')
    A(f's_add_u32 s28, s28, s29')
    A(f's_add_u32 s28, s28, {OFF_H}')
    A(f'v_add_u32 v{VL}, s28, v1')
    for j in range(1, 8):
        A(f'v_add_u32 v{VL + j}, {(j >> 1) * 112 * 1024 + (j & 1) * 1024 - (j & 3) * 1024}, v{VL}')
    A(f's_branch {LE}')
    A.label(LB_)
    make_srd(A, SRD_L, P_W2, 1024 * 3584 * 2)
    A(f's_add_u32 s30, s30, {G2B}')
    for t in range(1, 4):
        A(f's_mov_b32 s{24 + t}, {t * 131072}')
    for q in range(7):
        A(f's_lshl_b32 s{32 + q}, s{32 + q}, 20')
    A(f's_lshl_b32 s28, s28, 16')
    A(f's_lshl_b32 s29, s{S_TN2}, 8')
    A(f's_add_u32 s28, s28, s29')
    A(f's_lshl_b32 s29, s{S_KH}, 19')
    A(f's_add_u32 s28, s28, s29')
    A(f'v_lshrrev_b32 v{VL + 8}, 4, v0')
    A(f'v_and_b32 v{VL + 9}, 15, v0')
    for e in range(2):
        A(f'v_lshl_add_u32 v{VL + 10}, v{VL + 8}, 1, {8 * e}')
        A(f'v_xor_b32 v{VL + 10}, v{VL + 10}, v{VL + 9}')
        A(f'v_lshlrev_b32 v{VL + 10}, 4, v{VL + 10}')
        A(f'v_lshl_add_u32 v{VL + 10}, v{VL + 8}, 11, v{VL + 10}')
        A(f'v_add_u32 v{VL + 10}, s28, v{VL + 10}')
        for j in range(e, 8, 2):
            A(f'v_add_u32 v{VL + j}, {4 * j * 2048 - (j & 3) * 1024}, v{VL + 10}')
    A.label(LE)


def g2_issue(A, Q, k):
    A(f's_add_u32 s28, s{32 + (k >> 2)}, s{24 + (k & 3)}')
    for j in range(8):
        if (j & 3) == 0:
            A(f's_add_u32 m0, s30, {(k & 3) * 16384 + (j >> 2) * 4096}')
        Q(f'buffer_load_dwordx4 v{VL + j}, s[{SRD_L}:{SRD_L + 3}], s28 offen offset:{(j & 3) * 1024} sc1 lds', f'g2s{k}')


def g1_loader(A, cfg, ST, L_TAILA, L_TAILB):
    SRD = 8
    vD = 2
    LM, LB_, LE = A.newlabel('g1_misc'), A.newlabel('g1l_b'), A.newlabel('g1l_e')
    A('v_lshlrev_b32 v1, 4, v0')
    A(f's_cmp_eq_u32 s{S_W}, 3')
    A(f's_cbranch_scc1 {LM}')
    A(f's_cmp_lg_u32 s{S_W}, 0')
    A(f's_cbranch_scc1 {LB_}')
    A('v_lshrrev_b32 v20, 3, v0')
    A('v_lshlrev_b32 v21, 19, v20')
    A('v_and_b32 v22, 7, v0')
    A('v_lshrrev_b32 v23, 4, v0')
    A(f's_lshl_b32 s28, s{S_TM}, 15')
    A('v_add_u32 v21, s28, v21')
    for e in range(2):
        A(f'v_or_b32 v24, {4 * e}, v23')
        A('v_xor_b32 v24, v24, v22')
        A('v_lshl_add_u32 v24, v24, 4, v21')
        for q in range(e, 8, 2):
            A(f'v_add_u32 v{vD + q}, {q * 2048 - (q & 3) * 1024}, v24')
    A('s_mov_b32 s6, 0')
    A('s_movk_i32 s7, 16384')
    A('s_movk_i32 s12, 128')
    A('s_movk_i32 s13, 16384')
    A('s_waitcnt lgkmcnt(0)')
    make_srd(A, SRD, P_X, 4 << 20)
    A(f's_branch {LE}')
    A.label(LB_)
    A('v_lshrrev_b32 v25, 5, v0')
    A('v_and_b32 v26, 31, v0')
    A(f's_sub_u32 s29, s{S_W}, 1')
    A(f's_mul_i32 s28, s29, {32 * 7168}')
    A('s_lshl_b32 s6, s29, 14')
    A(f's_add_u32 s6, s6, {G1B}')
    A(f's_lshl_b32 s29, s{S_I}, 9')
    A('s_add_u32 s28, s28, s29')
    A('v_mul_u32_u24 v27, 7168, v25')
    A('v_add_u32 v27, s28, v27')
    for e in range(4):
        fc = (2 * (e & 1)) | ((e >> 1) << 2)
        A(f'v_or_b32 v28, {fc}, v25')
        A('v_lshlrev_b32 v28, 1, v28')
        A('v_xor_b32 v28, v28, v26')
        A('v_lshl_add_u32 v28, v28, 4, v27')
        for i in range(8):
            if (i & 1) == (e & 1) and (i >> 2) == (e >> 1):
                A(f'v_add_u32 v{vD + i}, {2 * i * 7168 - (i & 3) * 1024}, v28')
    A('s_mov_b32 s7, 32768')
    A(f's_mov_b32 s12, {64 * 7168}')
    A(f's_mov_b32 s13, {16 * 7168}')
    A('s_waitcnt lgkmcnt(0)')
    make_srd(A, SRD, P_W1, 1024 * 3584 * 2)
    A.label(LE)
    A('s_barrier')
    A(f's_and_b32 s14, s{S_TM}, 12')
    A('s_mov_b32 s15, s6')
    A('s_mul_i32 s31, s7, 3')
    A('s_add_u32 s31, s31, s6')

    def issue():
        A('s_mul_i32 s28, s14, s12')
        A('s_add_u32 s29, s28, s13')
        for j in range(16):
            if (j & 3) == 0:
                A(f's_add_u32 m0, s15, {(j >> 2) * 4096}')
            A(f'buffer_load_dwordx4 v{vD + (j & 7)}, s[{SRD}:{SRD + 3}], s{28 + (j >> 3)} offen offset:{(j & 3) * 1024} lds')
        A('s_add_u32 s14, s14, 1')
        A('s_and_b32 s14, s14, 15')
        A('s_add_u32 s15, s15, s7')
        A('s_cmp_eq_u32 s15, s31')
        A('s_cselect_b32 s15, s6, s15')
    issue()
    ST.take(A, 5, 'ld')
    if cfg.get('s0wait'):
        A('s_waitcnt vmcnt(0)')
        ST.take(A, 6, 'ld')
    issue()
    ST.take(A, 1, 'ld')
    fft2.ws_srd(A)
    A('s_mov_b32 s30, 0')
    A('s_waitcnt vmcnt(16)')
    ST.take(A, 2, 'ld')
    L = A.newlabel('g1l_loop')
    A.label(L)
    A('s_barrier')
    issue()
    A('s_add_u32 s30, s30, 1')
    A('s_cmp_lt_u32 s30, 14')
    A('s_waitcnt vmcnt(16)')
    A(f's_cbranch_scc1 {L}')
    g2_loader_setup(A)
    A('s_barrier')
    LT = A.newlabel('g1_tailb')
    A(f's_cmp_ge_u32 s{S_W}, 2')
    A(f's_cbranch_scc1 {LT}')
    A('s_waitcnt vmcnt(0)')
    A('s_barrier')
    A('s_barrier')
    t2_poll_issue(A)
    A('s_barrier')
    A(f's_branch {L_TAILA}')
    A.label(LT)
    QB = VQ(A)
    g2_issue(A, QB, 0)
    g2_issue(A, QB, 1)
    A('s_waitcnt vmcnt(16)')
    A('s_barrier')
    g2_issue(A, QB, 2)
    g2_issue(A, QB, 3)
    A('s_barrier')
    A('s_barrier')
    A(f's_branch {L_TAILB}')

    A.label(LM)
    Q = VQ(A)
    SRD_P, SRD_Q = 8, 12
    vz, vp = 16, 17
    A('s_waitcnt lgkmcnt(0)')
    A('s_barrier')
    fft2.ws_srd(A)
    ST.take(A, 1, 'misc')
    if cfg.get('pf_code'):
        code_touch(A, cfg)
    make_srd(A, 8, P_WR, 2048 * 513 * 2)
    make_srd(A, 12, P_WI, 2048 * 513 * 2)
    fft2.wc_load(A, 32)
    nyw = 1
    if cfg.get('pf_w', 1):
        nyw += 4
        A(f's_and_b32 s28, s{S_TM}, 3')
        A('s_mul_i32 s28, s28, 7')
        A(f's_add_u32 s28, s28, s{S_TN2}')
        A('s_mul_i32 s28, s28, 92')
        A(f's_lshr_b32 s29, s{S_TM}, 2')
        A('s_sub_u32 s30, 8, s29')
        A('s_cmp_eq_u32 s29, 0')
        A('s_cselect_b32 s30, 4, s30')
        A('s_sub_u32 s30, s30, s29')
        A('s_mul_i32 s30, s30, 1026')
        A('s_mul_i32 s29, s29, 1026')
        A(f's_lshl_b32 s32, s{S_KH}, 9')
        A('s_add_u32 s29, s29, s32')
        for z in range(2):
            A(f'v_add_u32 v20, s28, v0')
            if z:
                A('v_add_u32 v20, 64, v20')
            A('v_mul_u32_u24 v21, 52429, v20')
            A('v_lshrrev_b32 v21, 18, v21')
            A('v_mul_u32_u24 v22, 5, v21')
            A('v_sub_u32 v20, v20, v22')
            A('v_and_b32 v22, 255, v21')
            A('v_mul_u32_u24 v22, 8208, v22')
            A('v_lshl_add_u32 v22, v20, 7, v22')
            A('v_lshrrev_b32 v21, 8, v21')
            A('v_mul_lo_u32 v21, v21, s30')
            A(f'v_add3_u32 v{24 + z}, v21, v22, s29')
            A(f'v_and_b32 v{24 + z}, -4, v{24 + z}')
        for z in range(2):
            if z:
                A('s_mov_b64 exec, 0xfffffff')
            A(f'buffer_load_dword v22, v{24 + z}, s[8:11], 0 offen')
            A(f'buffer_load_dword v22, v{24 + z}, s[12:15], 0 offen')
        A('s_mov_b64 exec, -1')
    make_srd(A, 20, P_W1, 1024 * 3584 * 2)
    A('v_lshrrev_b32 v20, 3, v0')
    A('v_mul_u32_u24 v20, 7168, v20')
    A('v_and_b32 v21, 7, v0')
    A('v_lshl_add_u32 v20, v21, 6, v20')
    A(f's_and_b32 s28, s{S_TM}, 12')
    A('s_add_u32 s28, s28, 2')
    A('s_lshl_b32 s28, s28, 1')
    A(f's_and_b32 s29, s{S_TM}, 3')
    A('s_add_u32 s28, s28, s29')
    A(f's_mul_i32 s30, s28, {32 * 7168}')
    A(f's_lshl_b32 s29, s{S_I}, 9')
    A('s_add_u32 s30, s30, s29')
    npf = 4 if cfg.get('pf_s23', 1) else 0
    for n in range(npf):
        A('buffer_load_dword v22, v20, s[20:23], s30 offen')
        A(f's_add_u32 s30, s30, {8 * 7168}')
    boot_check(A, vz, vp, check=False)
    ST.take(A, 2, 'misc')
    A(f's_waitcnt vmcnt({nyw + npf})')
    fft2.wc_store(A, 32)
    ST.take(A, 3, 'misc')
    A('s_barrier')
    ST.take(A, 4, 'misc')
    p1sig = cfg.get('p1sig', 1)
    KP, KA, KW = cfg.get('kp', 8), cfg.get('ka', 9), cfg.get('kw', 11)
    AD = 64
    for k in range(14):
        if k == KW + 1:
            A('s_waitcnt lgkmcnt(0)')
        A('s_barrier')
        if k in cfg.get('gk', []):
            ST.take(A, 1 + cfg['gk'].index(k), 'gk')
        if k == p1sig:
            boot_check(A, vz, vp, issue=False)
        if k == p1sig:
            line(A, 42, L_P1, S_TM)
            signal(A, 's42', 20, 21, Q)
            ST.take(A, 5, 'misc')
        if k == cfg.get('cssig', 5):
            line(A, 42, L_CS, S_I)
            signal(A, 's42', 20, 21, Q)
        pk = cfg.get('pfk', 1)
        if pk <= k < pk + 8 and cfg.get('pf_w2', 1):
            if k == pk:
                make_srd(A, SRD_P, P_W2, 1024 * 3584 * 2)
                A(f's_mul_i32 s39, s{S_TM}, 14')
                A(f's_add_u32 s39, s39, s{S_I}')
                A('s_lshl_b32 s39, s39, 15')
                A('v_lshlrev_b32 v18, 6, v0')
            Q(f'buffer_load_dword v19, v18, s[{SRD_P}:{SRD_P + 3}], s39 offen', 'pf')
            A('s_add_u32 s39, s39, 4096')
        if k == KP:
            line(A, 42, L_P1, S_TM)
            line(A, 41, L_CS, S_I)
            A(f'v_mov_b32 v{vz}, s42')
            A(f'v_writelane_b32 v{vz}, s41, 1')
            Q(f'buffer_load_dword v{vp}, v{vz}, {WS}, 0 offen sc1', 'poll')
        if k == KA:
            Q.wait('poll')
            spin(A, vz, vp, 0, 16, nl=2, first_done=True)
            A(f's_lshl_b32 s28, s{S_I}, 10')
            A(f's_add_u32 s28, s28, {OFF_CS}')
            for p in range(16):
                Q(f'buffer_load_dwordx4 v[{AD + 4 * p}:{AD + 4 * p + 3}], v1, {WS}, s28 offen sc1', 'aux')
                if p < 15:
                    A(f's_add_u32 s28, s28, {3584 * 4}')
            make_srd(A, SRD_Q, P_B1, 3584 * 2)
            A('v_lshlrev_b32 v20, 3, v0')
            A(f's_lshl_b32 s28, s{S_I}, 9')
            Q(f'buffer_load_dwordx2 v[128:129], v20, s[{SRD_Q}:{SRD_Q + 3}], s28 offen', 'aux')
            A(f's_lshl_b32 s28, s{S_TM}, 10')
            A(f's_add_u32 s28, s28, {OFF_ST}')
            Q(f'buffer_load_dwordx4 v[132:135], v1, {WS}, s28 offen sc1', 'aux')
            g2_loader_setup(A)
        if k == KW:
            Q.wait('aux')
            for st in (32, 16, 8, 4):
                for p in range(st):
                    A(f'v_add_f32 v{AD + p}, v{AD + p}, v{AD + p + st}')
            O = AD + 8
            for c in range(4):
                A(f'v_cvt_pk_bf16_f32 v{AD + 4 + c}, v{AD + c}, v{AD + c}')
            for c in range(4):
                A(f'v_and_b32 v{O + 2 * c}, 0xffff0000, v{AD + 4 + c}')
                A(f'v_sub_f32 v{AD + c}, v{AD + c}, v{O + 2 * c}')
                A(f'v_cvt_pk_bf16_f32 v{O + 2 * c + 1}, v{AD + c}, 0')
                if c & 1:
                    A(f'v_bfi_b32 v{O + 2 * c}, v{136}, v{AD + 4 + c}, v{128 + (c >> 1)}')
                else:
                    if c == 0:
                        A('v_mov_b32 v136, 0xffff')
                    A(f'v_alignbit_b32 v{O + 2 * c}, v{128 + (c >> 1)}, v{AD + 4 + c}, 16')
            A(f'v_lshlrev_b32 v20, 5, v0')
            A(f'v_add_u32 v20, {AUXW}, v20')
            A(f'ds_write_b128 v20, v[{O}:{O + 3}]')
            A(f'ds_write_b128 v20, v[{O + 4}:{O + 7}] offset:16')
            A('v_mov_b32 v133, v132')
            A('v_mov_b32 v135, v134')
            A(f'v_add_u32 v20, {AUXX}, v1')
            A('ds_write_b128 v20, v[132:135]')
            for r in range(4):
                A(f'v_mov_b32 v{AD + r}, 0')
            A(f'ds_write_b128 v20, v[{AD}:{AD + 3}] offset:1024')
    A(f's_branch {LT}')


def code_touch(A, cfg):
    A('s_getpc_b64 s[28:29]')
    A.label('f_pc')
    A('s_sub_u32 s28, s28, f_pc-fused_kernel')
    A('s_subb_u32 s29, s29, 0')
    A('s_lshr_b32 s30, s48, 3')
    A('s_lshl_b32 s30, s30, 4')
    A('v_add_u32 v20, s30, v0')
    A('v_lshlrev_b32 v20, 7, v20')
    A('v_min_u32 v20, f_exit-fused_kernel, v20')
    A('global_load_dword v22, v20, s[28:29]')


def t2_poll_issue(A):
    line(A, 42, L_T2, S_TM)
    A('v_mov_b32 v16, s42')
    A(f'buffer_load_dword v17, v16, {WS}, 0 offen sc1')


def tail_loaders(A, cfg, ST, L_TAILA, L_TAILB):
    NS = 28
    LJ = [A.newlabel(f'g2l_k{k}') for k in range(4)]
    A.label(L_TAILA)
    A('v_lshrrev_b32 v20, 4, v0')
    A('v_and_b32 v21, 7, v0')
    A('v_xor_b32 v21, v21, v20')
    A('v_lshrrev_b32 v20, 3, v0')
    A('v_lshlrev_b32 v20, 7, v20')
    A('v_lshl_add_u32 v20, v21, 4, v20')
    A('v_xor_b32 v21, 64, v20')
    A('s_lshl_b32 s28, s2, 14')
    A(f's_add_u32 s28, s28, s30')
    A(f's_add_u32 s28, s28, {OFF_T2}')
    A('s_waitcnt vmcnt(0)')
    spin(A, 16, 17, 0, 32, first_done=True)
    ST.take(A, 3, 'ld')
    for j in range(8):
        if (j & 3) == 0:
            A(f's_add_u32 m0, s30, {T2IN + (j >> 2) * 4096}')
            if j:
                A('s_add_u32 s28, s28, 4096')
        A(f'buffer_load_dwordx4 v{20 + (j & 1)}, {WS}, s28 offen offset:{(j & 3) * 1024} sc1 lds')
    line(A, 42, L_H, S_TM, 2, S_KH)
    A('v_mov_b32 v16, s42')
    A('s_waitcnt vmcnt(0)')
    A('s_barrier')
    A('s_barrier')
    LM = A.newlabel('g2l_mid')
    A(f's_cmp_lg_u32 s{S_MID}, 0')
    A(f's_cbranch_scc1 {LM}')
    R = [A.newlabel(f'g2l_r{k}') for k in range(3)]
    A('s_barrier')
    for k in range(2):
        A(f'buffer_load_dword v17, v16, {WS}, 0 offen sc1')
        A('s_barrier')
        A('s_waitcnt vmcnt(0)')
        A('v_readfirstlane_b32 s28, v17')
        A('s_cmp_ge_u32 s28, 28')
        A(f's_cbranch_scc1 {R[k]}')
    A('s_barrier')
    spin(A, 16, 17, 0, 28)
    ST.take(A, 4, 'ld')
    Q = VQ(A)
    for k in (4, 5, 6):
        g2_issue(A, Q, k)
    A(f's_branch {LJ[3]}')
    A.label(R[0])
    ST.take(A, 4, 'ld')
    g2_issue(A, Q, 4)
    A('s_barrier')
    g2_issue(A, Q, 5)
    LR = A.newlabel('g2l_r01')
    A(f's_branch {LR}')
    A.label(R[1])
    ST.take(A, 4, 'ld')
    g2_issue(A, Q, 4)
    g2_issue(A, Q, 5)
    A.label(LR)
    A('s_barrier')
    g2_issue(A, Q, 6)
    A(f's_branch {LJ[3]}')
    A.label(LM)
    spin(A, 16, 17, 0, 28)
    ST.take(A, 4, 'ld')
    for k in range(4):
        g2_issue(A, Q, k)
    A('s_waitcnt vmcnt(24)')
    A('s_barrier')
    A(f's_branch {LJ[0]}')
    A.label(L_TAILB)
    A('s_waitcnt vmcnt(0)')
    A('s_barrier')
    A('s_barrier')
    A('s_barrier')
    KS, KP = cfg.get('ssig', 3), 21
    LE = A.newlabel('g2l_end')
    for k in range(NS):
        if k < 4:
            A.label(LJ[k])
        if k <= 23:
            n = 16 + (1 if k in (KS + 1, KS + 2, KP + 1) else 0) * 0
            A(f's_waitcnt vmcnt({n})')
        A('s_barrier')
        if k == KS:
            LS = A.newlabel('nossig')
            A(f's_cmp_lg_u32 s{S_W}, 2')
            A(f's_cbranch_scc1 {LS}')
            line(A, 42, L_S, S_TM)
            signal(A, 's42', 20, 21)
            A.label(LS)
        if k == KP:
            line(A, 42, L_S, S_TM)
            A('v_mov_b32 v16, s42')
            A(f'buffer_load_dword v17, v16, {WS}, 0 offen sc1')
        if k + 4 < NS:
            g2_issue(A, Q, k + 4)
        if k == 23:
            break
    A('v_lshrrev_b32 v20, 3, v0')
    A('v_lshrrev_b32 v21, 4, v0')
    A('v_and_b32 v22, 7, v0')
    A('v_xor_b32 v21, v21, v22')
    A('v_lshlrev_b32 v21, 4, v21')
    A('v_lshl_add_u32 v20, v20, 11, v21')
    A('v_xor_b32 v21, 64, v20')
    A(f'v_add_u32 v21, {8 * 2048 - 1024}, v21')
    A(f'v_add_u32 v22, {16 * 2048 - 2048}, v20')
    A(f'v_add_u32 v23, {16 * 2048 - 2048}, v21')
    A(f's_lshl_b32 s28, s{S_TM}, 7')
    A(f's_lshl_b32 s29, s{S_W}, 5')
    A('s_add_u32 s28, s28, s29')
    A('s_lshl_b32 s28, s28, 11')
    A(f's_lshl_b32 s29, s{S_I}, 7')
    A('s_add_u32 s28, s28, s29')
    A(f's_add_u32 s28, s28, {OFF_S}')
    A(f's_lshl_b32 s29, s{S_W}, 12')
    A('s_waitcnt vmcnt(16)')
    spin(A, 16, 17, 0, 16, first_done=True)
    A(f's_add_u32 m0, s29, {T2IN}')
    for j in range(4):
        A(f'buffer_load_dwordx4 v{20 + j}, {WS}, s28 offen offset:{j * 1024} sc1 lds')
    A('s_barrier')
    A('s_waitcnt vmcnt(12)')
    A('s_barrier')
    A('s_waitcnt vmcnt(4)')
    A('s_barrier')
    A('s_waitcnt vmcnt(0)')
    A('s_barrier')
    ST.flush(A, cfg.get('ldst', [0, 1, 2, 3, 4, 7]), P_WS, S_W, wadd=4)
    A('s_endpgm')


def tail_consumer(A, cfg, ST):
    RG = fft2.ifft_regs(1)
    assert RG['end'] <= 192
    A('v_mbcnt_lo_u32_b32 v0, -1, 0')
    A('v_mbcnt_hi_u32_b32 v0, -1, v0')
    fft2.ifft_consts(A, 2, RG, XCH, T2IN)
    line(A, 42, L_H, S_TM, 2, S_KH)

    def hsig(n):
        LS = A.newlabel('nohsig')
        A(f's_cmp_lg_u32 s{S_MID}, 0')
        A(f's_cbranch_scc1 {LS}')
        A(f's_waitcnt vmcnt({n})')
        signal(A, 's42', 190, 191)
        A.label(LS)
    hs = cfg.get('hsig', 2)
    if hs == 0:
        hsig(0)
    A('s_waitcnt lgkmcnt(0)')
    A('s_barrier')
    ST.take(A, 4, 'main')
    fft2.ifft_compute(A, 2, RG, mid_hook=(lambda A: hsig(0)) if hs == 1 else None)
    if hs == 2:
        hsig(4)
    ST.take(A, 5, 'main')
    vX, vW, vO, vE, vSr, vT = 64, 66, 70, 71, 72, 74
    vB2, vRI, vXD, vSD = 84, 88, 96, 112
    FR = 128
    SRD_A, SRD_B, SRD_C = 16, 20, 24
    A(f's_lshr_b32 s28, s{S_W}, 1')
    A(f's_and_b32 s29, s{S_W}, 1')
    A(f'v_lshrrev_b32 v{vT}, 4, v0')
    A(f'v_lshlrev_b32 v{vE}, 4, v0')
    A(f's_lshl_b32 s31, s28, 13')
    A(f'v_add_u32 v{vX}, s31, v{vE}')
    t0 = vT + 2
    A(f'v_bfe_u32 v{t0}, v0, 2, 2')
    A(f'v_lshl_add_u32 v{t0}, v{vT}, 2, v{t0}')
    A(f'v_and_b32 v{t0 + 1}, 7, v{t0}')
    A(f'v_lshlrev_b32 v{t0}, 8, v{t0}')
    A(f'v_and_b32 v{t0 + 2}, 3, v0')
    A(f'v_lshl_add_u32 v{t0}, v{t0 + 2}, 3, v{t0}')
    A(f'v_add_u32 v{t0}, {G2B}, v{t0}')
    A(f's_lshl_b32 s31, s29, 1')
    A(f's_lshl_b32 s32, s{S_KH}, 2')
    A(f's_add_u32 s31, s31, s32')
    for nt in range(4):
        A(f's_xor_b32 s32, s31, {(nt & 1) | ((nt >> 1) << 2)}')
        A(f'v_xor_b32 v{t0 + 2}, s32, v{t0 + 1}')
        A(f'v_lshl_add_u32 v{vW + nt}, v{t0 + 2}, 5, v{t0}')

    def reads(st, kb):
        w, x = [], []
        for nt in range(4):
            for t in range(2):
                d = FR + 32 * st + nt * 4 + 2 * t
                w.append(f'ds_read_b64_tr_b16 v[{d}:{d + 1}], v{vW + nt} offset:{kb * 8192 + t * 4096}')
        for mt in range(4):
            d = FR + 32 * st + 16 + mt * 4
            x.append(f'ds_read_b128 v[{d}:{d + 3}], v{vX} offset:{(mt * 2 + kb) * 1024}')
        return w + x

    def substep(st, rd, extra, first=False):
        rd = list(rd)
        extra = list(extra)
        for mt in range(4):
            for nt in (range(4) if mt % 2 == 0 else range(3, -1, -1)):
                c = (nt * 4 + mt) * 4
                w = FR + 32 * st + nt * 4
                x = FR + 32 * st + 16 + mt * 4
                A(f'v_mfma_f32_16x16x32_bf16 v[{c}:{c + 3}], v[{w}:{w + 3}], v[{x}:{x + 3}], ' + ('0' if first else f'v[{c}:{c + 3}]'))
                if rd:
                    A(rd.pop(0))
                else:
                    for _ in range(3):
                        if extra:
                            A(extra.pop(0))
        for e in extra:
            A(e)
    A('s_barrier')
    for ins in reads(0, 0):
        A(ins)
    A(f's_lshl_b32 s30, s{S_I}, 7')
    A(f's_lshl_b32 s31, s29, 6')
    A(f's_add_u32 s30, s30, s31')
    A(f'v_lshlrev_b32 v{vT + 1}, 3, v{vT}')
    make_srd(A, SRD_B, P_B2, 1024 * 2)
    for nt in range(2):
        A(f'buffer_load_dwordx2 v[{vB2 + 2 * nt}:{vB2 + 2 * nt + 1}], v{vT + 1}, s[{SRD_B}:{SRD_B + 3}], s30 offen offset:{nt * 32}')
    make_srd(A, SRD_A, P_X, 4 << 20)
    make_srd(A, SRD_C, P_OUT, 4 << 20)
    A(f'v_and_b32 v{t0}, 1, v{vT}')
    A(f'v_lshlrev_b32 v{t0}, 1, v{t0}')
    A(f'v_lshrrev_b32 v{t0 + 1}, 1, v{vT}')
    A(f'v_add_u32 v{t0}, v{t0}, v{t0 + 1}')
    A(f'v_lshl_add_u32 v{t0 + 3}, v{t0}, 4, s30')
    A(f'v_and_b32 v{t0 + 1}, 7, v0')
    A(f'v_lshlrev_b32 v{t0 + 1}, 8, v{t0 + 1}')
    A(f'v_bfe_u32 v{t0 + 2}, v0, 3, 1')
    A(f'v_add_u32 v{t0 + 1}, v{t0 + 1}, v{t0 + 2}')
    A(f's_lshl_b32 s31, s{S_TM}, 4')
    A(f's_lshl_b32 s32, s28, 3')
    A(f's_add_u32 s31, s31, s32')
    A(f'v_add_u32 v{t0 + 1}, s31, v{t0 + 1}')
    A(f'v_lshl_add_u32 v{vO}, v{t0 + 1}, 11, v{t0 + 3}')
    for mt in range(4):
        A(f's_mov_b32 s33, {mt * 4096}')
        A(f'buffer_load_dwordx4 v[{vXD + 4 * mt}:{vXD + 4 * mt + 3}], v{vO}, s[{SRD_A}:{SRD_A + 3}], s33 offen')
    A(f'v_and_b32 v{t0 + 1}, 15, v0')
    A(f'v_lshlrev_b32 v{t0 + 2}, 3, v{t0 + 1}')
    A(f's_lshl_b32 s31, s31, 6')
    A(f's_add_u32 s31, s31, {OFF_ST}')
    for mt in range(4):
        A(f'buffer_load_dword v{vRI + mt}, v{t0 + 2}, {WS}, s31 offen offset:{mt * 128 + 4} sc1')
    A(f's_lshl_b32 s32, s29, 2')
    A(f'v_add_u32 v{t0}, s32, v{t0}')
    A(f'v_lshrrev_b32 v{t0 + 2}, 1, v{t0 + 1}')
    A(f'v_xor_b32 v{t0}, v{t0}, v{t0 + 2}')
    A(f'v_lshlrev_b32 v{t0}, 4, v{t0}')
    A(f'v_lshl_add_u32 v{t0}, v{t0 + 1}, 7, v{t0}')
    A(f's_lshl_b32 s32, s28, 13')
    A(f's_add_u32 s32, s32, {T2IN}')
    A(f'v_add_u32 v{vSr}, s32, v{t0}')
    A('s_xor_b32 s39, s2, 1')
    A('s_lshl_b32 s36, s2, 7')
    A('s_lshl_b32 s37, s39, 7')
    A(f's_lshl_b32 s31, s{S_W}, 2')
    A(f's_add_u32 s31, s31, {OFF_SY + L_EX * 128}')
    A('s_add_u32 s36, s36, s31')
    A('s_add_u32 s37, s37, s31')
    A('s_lshl_b32 s38, s2, 15')
    A('s_lshl_b32 s39, s39, 15')
    A(f's_lshl_b32 s31, s{S_W}, 13')
    A(f's_add_u32 s31, s31, {OFF_EX}')
    A('s_add_u32 s38, s38, s31')
    A('s_add_u32 s39, s39, s31')
    A('s_mov_b32 s30, 0')
    A('s_mov_b32 s31, 0')
    A(f's_mov_b32 s34, {-3 * 16384 & 0xffffffff:#x}')
    A('s_waitcnt lgkmcnt(0)')
    upd = ['s_add_u32 s31, s31, 1', 's_cmp_eq_u32 s31, 4', 's_cselect_b32 s32, s34, 16384', 's_cselect_b32 s31, 0, s31',
           f'v_add_u32 v{vX}, s32, v{vX}'] + [f'v_add_u32 v{vW + nt}, s32, v{vW + nt}' for nt in range(4)]
    substep(0, reads(1, 1), upd, first=True)
    L, LL, LV = A.newlabel('g2_loop'), A.newlabel('g2_last'), A.newlabel('g2_nov')
    A.label(L)
    A(f's_cmp_lg_u32 s30, {cfg.get("ssig", 3)}')
    A(f's_cbranch_scc1 {LV}')
    A('s_waitcnt vmcnt(0)')
    A.label(LV)
    A('s_cmp_eq_u32 s30, 27')
    A('s_waitcnt lgkmcnt(0)')
    A('s_barrier')
    A(f's_cbranch_scc1 {LL}')
    substep(1, reads(0, 0), ['s_add_u32 s30, s30, 1'])
    A('s_waitcnt lgkmcnt(0)')
    substep(0, reads(1, 1), upd)
    A(f's_branch {L}')
    A.label(LL)
    substep(1, [f'ds_read_b128 v[{vSD + 4 * mt}:{vSD + 4 * mt + 3}], v{vSr} offset:{mt * 2048}' for mt in range(4)], [])
    ST.take(A, 6, 'main')
    for q in range(8):
        if q == 4:
            A('s_add_u32 s38, s38, 4096')
        A(f'buffer_store_dwordx4 v[{32 + 4 * q}:{35 + 4 * q}], v{vE}, {WS}, s38 offen offset:{(q & 3) * 1024} sc1')
    A(f'v_mov_b32 v{vT}, 1')
    A(f'v_mov_b32 v{vT + 1}, 0')
    BF = FR + 48
    for nt in range(2):
        for h in range(2):
            A(f'v_lshlrev_b32 v{BF + 4 * nt + 2 * h}, 16, v{vB2 + 2 * nt + h}')
            A(f'v_and_b32 v{BF + 4 * nt + 2 * h + 1}, 0xffff0000, v{vB2 + 2 * nt + h}')
    A('s_add_u32 s33, s39, 4096')
    A('s_waitcnt vmcnt(0) lgkmcnt(0)')
    A('s_mov_b64 exec, 1')
    A(f'buffer_store_dword v{vT}, off, {WS}, s36 sc1')
    spin(A, vT + 1, vT + 2, 's37', 1)
    A('s_mov_b64 exec, -1')
    for q in (0, 4, 1, 5, 2, 6, 3, 7):
        A(f'buffer_load_dwordx4 v[{32 + 4 * q}:{35 + 4 * q}], v{vE}, {WS}, s{39 if q < 4 else 33} offen offset:{(q & 3) * 1024} sc1')
    A('s_mov_b32 s6, 0xbfb8aa3b')
    A('s_mov_b32 s7, 0xbfb8aa3b')
    A('s_mov_b32 s35, 0xffff0000')
    E = FR
    for mt in range(4):
        c0 = mt * 4
        c1 = 16 + mt * 4
        A(f's_waitcnt vmcnt({6 - mt})')
        for (c, nt) in ((c0, 0), (c1, 1)):
            for r in (0, 2):
                A(f'v_pk_add_f32 v[{c + r}:{c + r + 1}], v[{c + r}:{c + r + 1}], v[{c + r + 32}:{c + r + 33}]')
        A(f'v_mov_b32 v{vT + 2}, v{vRI + mt}')
        for (c, nt) in ((c0, 0), (c1, 1)):
            for r in (0, 2):
                A(f'v_pk_fma_f32 v[{c + r}:{c + r + 1}], v[{c + r}:{c + r + 1}], v[{vT + 2}:{vT + 3}], v[{BF + 4 * nt + r}:{BF + 4 * nt + r + 1}] op_sel_hi:[1,0,1]')
        for r in range(4):
            A(f'v_permlane16_swap_b32 v{c0 + r}, v{c1 + r}')
        vals = [c0, c0 + 2, c1, c1 + 2]
        e = E + (mt & 1) * 24
        for q in range(4):
            A(f'v_pk_mul_f32 v[{e + 2 * q}:{e + 2 * q + 1}], v[{vals[q]}:{vals[q] + 1}], s[6:7]')
        for q in range(8):
            A(f'v_exp_f32 v{e + q}, v{e + q}')
        for q in range(4):
            A(f'v_lshlrev_b32 v{e + 8 + 2 * q}, 16, v{vSD + 4 * mt + q}')
            A(f'v_and_b32 v{e + 9 + 2 * q}, s35, v{vSD + 4 * mt + q}')
        for q in range(4):
            A(f'v_pk_add_f32 v[{e + 2 * q}:{e + 2 * q + 1}], v[{e + 2 * q}:{e + 2 * q + 1}], 1.0 op_sel_hi:[1,0]')
        for q in range(8):
            A(f'v_rcp_f32 v{e + q}, v{e + q}')
        for q in range(4):
            A(f'v_pk_mul_f32 v[{e + 8 + 2 * q}:{e + 9 + 2 * q}], v[{e + 8 + 2 * q}:{e + 9 + 2 * q}], v[{vals[q]}:{vals[q] + 1}]')
        for q in range(4):
            A(f'v_lshlrev_b32 v{e + 16 + 2 * q}, 16, v{vXD + 4 * mt + q}')
            A(f'v_and_b32 v{e + 17 + 2 * q}, s35, v{vXD + 4 * mt + q}')
        for q in range(4):
            A(f'v_pk_fma_f32 v[{e + 2 * q}:{e + 2 * q + 1}], v[{e + 2 * q}:{e + 2 * q + 1}], v[{e + 8 + 2 * q}:{e + 9 + 2 * q}], v[{e + 16 + 2 * q}:{e + 17 + 2 * q}]')
        for q in range(4):
            A(f'v_cvt_pk_bf16_f32 v{vXD + 4 * mt + q}, v{e + 2 * q}, v{e + 2 * q + 1}')
        A(f's_mov_b32 s31, {mt * 4096}')
        A(f'buffer_store_dwordx4 v[{vXD + 4 * mt}:{vXD + 4 * mt + 3}], v{vO}, s[{SRD_C}:{SRD_C + 3}], s31 offen {cfg.get("ostore", "")}')
    ST.flush(A, cfg.get('cst', [0, 1, 2, 3, 4, 5, 6, 7]), P_WS, S_W)
    A('s_endpgm')


def k_fused(cfg):
    A = Asm()
    ST = Stamps(cfg.get('stamp'), 0, cfg.get('sets', ['main', 'ld']))
    A('s_cmp_ge_u32 s2, 256')
    A('s_cbranch_scc1 f_exit')
    ST.take(A, 0)
    A('s_load_dwordx16 s[60:75], s[0:1], 0')
    A('s_load_dwordx4 s[52:55], s[0:1], 64')
    A('s_load_dwordx2 s[50:51], s[0:1], 80')
    A('v_lshrrev_b32 v1, 6, v0')
    A('v_and_b32 v0, 63, v0')
    A(f'v_mov_b32 v2, {fft2.FLG}')
    A('v_mov_b32 v3, 0')
    A('ds_write_b32 v2, v3')
    A('s_mov_b32 s48, s2')
    A('s_and_b32 s5, s2, 7')
    A('s_lshr_b32 s6, s2, 3')
    A('s_lshr_b32 s3, s5, 1')
    A('s_lshl_b32 s3, s3, 2')
    A('s_lshr_b32 s7, s6, 3')
    A('s_add_u32 s3, s3, s7')
    A('s_and_b32 s4, s6, 7')
    A('s_lshl_b32 s4, s4, 1')
    A(f's_and_b32 s{S_KH}, s5, 1')
    A(f's_add_u32 s4, s4, s{S_KH}')
    A(f'v_readfirstlane_b32 s{S_W}, v1')
    A('s_lshl_b32 s2, s3, 4')
    A('s_add_u32 s2, s2, s4')
    A(f's_lshr_b32 s{S_TN2}, s4, 1')
    A(f's_min_u32 s{S_OWN}, s{S_TN2}, 6')
    A('s_cmp_ge_u32 s4, 14')
    A(f's_cselect_b32 s{S_MID}, 1, 0')
    if ST.on:
        for j in range(1, 8):
            A(f's_mov_b64 s[{SB + 8 + 2 * j}:{SB + 9 + 2 * j}], -1')
    A(f's_lshl_b32 s28, s{S_W}, 8')
    A('s_add_u32 s28, s28, s2')
    A(f's_cmp_lg_u32 s28, {7 * 256 + 14}')
    A('s_cbranch_scc1 f_nozero')
    A('v_lshlrev_b32 v20, 7, v0')
    for r in range(4):
        A(f'v_mov_b32 v{28 + r}, 0')
    A('s_waitcnt lgkmcnt(0)')
    fft2.ws_srd(A)
    for n in range(L_N // 64):
        A(f's_mov_b32 s28, {OFF_SY + n * 8192}')
        A(f'buffer_store_dwordx4 v[28:31], v20, {WS}, s28 offen sc1')
    A('v_mov_b32 v20, 1')
    A('s_barrier')
    A('s_waitcnt vmcnt(0)')
    A('s_mov_b64 exec, 1')
    A(f'global_store_dword v28, v20, s[{P_DBG}:{P_DBG + 1}] sc1')
    A('s_mov_b64 exec, -1')
    ST.take(A, 5, 'boot')
    A('s_branch f_mid')
    A.label('f_nozero')
    A(f's_cmp_ge_u32 s{S_W}, 4')
    A('s_cbranch_scc1 f_hi')
    fft2.p1_rows(A, cfg, ST, P1_LB)
    A(f's_cmp_lg_u32 s{S_MID}, 0')
    A('s_cbranch_scc1 f_midlo')
    g1_consumer(A, cfg, ST)
    A.label('f_tailc')
    tail_consumer(A, cfg, ST)
    A.label('f_hi')
    A(f's_cmp_lg_u32 s{S_MID}, 0')
    A('s_cbranch_scc1 f_midhi')
    A(f's_sub_u32 s{S_W}, s{S_W}, 4')
    g1_loader(A, cfg, ST, 'f_taila', 'f_tailb')
    tail_loaders(A, cfg, ST, 'f_taila', 'f_tailb')
    A.label('f_midlo')
    boot_check(A, 2, 3, check=False)
    A(f'v_mov_b32 v4, {fft2.FLG}')
    A('v_mov_b32 v5, 1')
    A('s_waitcnt vmcnt(0)')
    A('s_mov_b64 exec, 1')
    A('ds_add_rtn_u32 v5, v4, v5')
    A('s_mov_b64 exec, -1')
    A('s_waitcnt lgkmcnt(0)')
    A('v_readfirstlane_b32 s28, v5')
    A('s_cmp_lg_u32 s28, 7')
    A('s_cbranch_scc1 f_mid')
    boot_check(A, 2, 3, issue=False)
    line(A, 42, L_P1, S_TM)
    signal(A, 's42', 2, 3)
    A('s_branch f_mid')
    A.label('f_midhi')
    A('s_waitcnt lgkmcnt(0)')
    A('s_barrier')
    fft2.ws_srd(A)
    A.label('f_mid')
    S_Q, S_CL = 20, 21
    A(f's_lshr_b32 s{S_CL}, s{S_TM}, 2')
    A(f's_and_b32 s{S_Q}, s{S_TM}, 3')
    A(f's_lshl_b32 s28, s{S_KH}, 2')
    A(f's_add_u32 s{S_Q}, s{S_Q}, s28')

    def wait_t(A, va):
        LS = A.newlabel('mid_nopoll')
        A(f's_cmp_lg_u32 s{S_W}, 4')
        A(f's_cbranch_scc1 {LS}')
        boot_check(A, va + 4, va + 5)
        A(f'v_and_b32 v{va}, 15, v0')
        A(f'v_lshlrev_b32 v{va}, 7, v{va}')
        A(f's_mov_b32 s42, {OFF_SY + L_P1 * 128}')
        spin(A, va, va + 1, 's42', 16, nl=16)
        A.label(LS)
    fft2.mid_body(A, cfg, ST, S_Q, S_CL, wait_t)
    A('s_waitcnt vmcnt(0)')
    A('s_barrier')
    ST.take(A, 6, 'mid2')
    A(f's_cmp_lt_u32 s{S_W}, 4')
    A('s_cbranch_scc1 f_tailc')
    A(f's_sub_u32 s{S_W}, s{S_W}, 4')
    LS = A.newlabel('not2sig')
    A(f's_cmp_lg_u32 s{S_W}, 0')
    A(f's_cbranch_scc1 {LS}')
    A('v_lshlrev_b32 v21, 7, v0')
    A('v_mov_b32 v20, 1')
    A(f's_mov_b32 s42, {OFF_SY + L_T2 * 128}')
    A('s_mov_b64 exec, 0xffff')
    A(f'buffer_atomic_add v20, v21, {WS}, s42 offen sc1')
    A('s_mov_b64 exec, -1')
    A.label(LS)
    A('v_lshlrev_b32 v1, 4, v0')
    g2_loader_setup(A)
    A(f's_cmp_ge_u32 s{S_W}, 2')
    A('s_cbranch_scc1 f_midb')
    t2_poll_issue(A)
    A('s_branch f_taila')
    A.label('f_midb')
    Q = VQ(A)
    for k in range(4):
        g2_issue(A, Q, k)
    A('s_branch f_tailb')
    A.label('f_exit')
    A('s_endpgm')
    return (cfg.get('name', 'fused_kernel'), A, 192, 256, 512, 163840)
```
